```python
import torch

def _softmax(x, axis=-1):
    return torch.softmax(x, dim=axis)
def _gelu(x):
    return torch.nn.functional.gelu(x, approximate="tanh")
def _silu(x):
    return torch.nn.functional.silu(x)
def _sigmoid(x):
    return torch.sigmoid(x)
def _layernorm(x, axis=-1, eps=1e-5):
    m = x.mean(dim=axis, keepdim=True)
    v = x.var(dim=axis, keepdim=True, unbiased=False)
    return (x - m) / torch.sqrt(v + eps)
def _scatter_add(tgt, idx, src, axis=0):
    return tgt.clone().index_add_(axis, idx, src)
def _segment_sum(src, seg, n):
    out = torch.zeros((n,) + src.shape[1:], dtype=src.dtype)
    return out.index_add_(0, seg, src)
def _pad(x, pw):
    flat = tuple(v for pair in reversed(pw) for v in pair)
    return torch.nn.functional.pad(x, flat)

kernel_name = 'interleave_layers__ssm_conv_h3__geglu_ffn__prompt'

def setup_inputs():

    _w = (lambda a: (lambda t: t.to(torch.bfloat16) if t.is_floating_point() else t)(torch.as_tensor(a)))
    def _A_setup():
        B, S, D = 1, 2048, 640
        ks = 4
        return {
            "q": _w((lambda *s: torch.randn(*s, dtype=torch.bfloat16) * 0.05)(B, S, D)),
            "k": _w((lambda *s: torch.randn(*s, dtype=torch.bfloat16) * 1.6)(B, S, D)),
            "v": _w((lambda *s: torch.randn(*s, dtype=torch.bfloat16) * 1.6)(B, S, D)),
            "shift_k": _w((lambda *s: torch.randn(*s, dtype=torch.bfloat16) * 1.6)(D, ks) * 0.5),
            "ssm_k": _w((lambda *s: torch.randn(*s, dtype=torch.bfloat16) * 1.6)(D, S) * (1.0 / S ** 0.5)),
            "ssm_D": _w((lambda *s: torch.randn(*s, dtype=torch.bfloat16) * 1.6)(D)),
        }
    _A_in = _A_setup()

    def _B_setup():
        B, S, D, F = 1, 2048, 640, 1728
        return {
            "x": _w((lambda *s: torch.randn(*s, dtype=torch.bfloat16) * 0.05)(B, S, D)),
            "w_gate": _w((lambda *s: torch.randn(*s, dtype=torch.bfloat16) * 0.2)(D, F)),
            "w_up": _w((lambda *s: torch.randn(*s, dtype=torch.bfloat16) * 0.2)(D, F)),
            "w_down": _w((lambda *s: torch.randn(*s, dtype=torch.bfloat16) * 0.2)(F, D)),
        }
    _B_in = _B_setup()

    return {
        "A_q": _A_in["q"],
        "A_k": _A_in["k"],
        "A_v": _A_in["v"],
        "A_shift_k": _A_in["shift_k"],
        "A_ssm_k": _A_in["ssm_k"],
        "A_ssm_D": _A_in["ssm_D"],
        "B_x": _B_in["x"],
        "B_w_gate": _B_in["w_gate"],
        "B_w_up": _B_in["w_up"],
        "B_w_down": _B_in["w_down"],
    }

def reference(A_q, A_k, A_v, A_shift_k, A_ssm_k, A_ssm_D, B_x, B_w_gate, B_w_up, B_w_down):
    def _A_ref(q, k, v, shift_k, ssm_k, ssm_D):
        B, S, D = q.shape
        ks = shift_k.shape[-1]
        k_pad = _pad(k, ((0, 0), (ks - 1, 0), (0, 0)))
        k_shift = torch.zeros_like(k)
        for t in range(ks):
            k_shift = k_shift + k_pad[:, t:t + S, :] * shift_k[:, ks - 1 - t][None, None, :]
        kv = k_shift * v
        L = 2 * S
        kv_pad = _pad(kv, ((0, 0), (0, S), (0, 0)))
        kf_pad = _pad(ssm_k, ((0, 0), (0, S)))
        kv_f = (lambda x, axes=(-2,-1): torch.fft.rfft2(x.float(), dim=axes))(kv_pad[:, None, :, :], axes=(1, 2))
        kf_f = (lambda x, axes=(-2,-1): torch.fft.rfft2(x.float(), dim=axes))(kf_pad[:, None, :], axes=(1, 2))
        kf_f = (lambda x, *d: x.permute(*d))(kf_f, 1, 2, 0)
        y_f = kv_f * kf_f[None, :, :, :]
        y = (lambda x, s, axes=(-2,-1): torch.fft.irfft2(x, s=s, dim=axes).to(torch.bfloat16))(y_f, (1, L), axes=(1, 2))[:, 0, :S, :]
        y = y + kv * ssm_D[None, None, :]
        return q * y

    def _B_ref(x, w_gate, w_up, w_down):
        return (_gelu(x @ w_gate) * (x @ w_up)) @ w_down

    x = A_q
    x = x + _A_ref(_layernorm(x, axis=-1), A_k, A_v, A_shift_k, A_ssm_k, A_ssm_D)
    x = x + _B_ref(_layernorm(x, axis=-1), B_w_gate, B_w_up, B_w_down)
    x = x + _A_ref(_layernorm(x, axis=-1), A_k, A_v, A_shift_k, A_ssm_k, A_ssm_D)
    x = x + _B_ref(_layernorm(x, axis=-1), B_w_gate, B_w_up, B_w_down)
    return x
```

```python
import re
KN = 'interleave_layers__ssm_conv_h3__geglu_ffn__prompt_kernel'

def regs_of(tok):
    tok = tok.strip()
    m = re.fullmatch(r'([vas])(\d+)', tok)
    if m: return {(m.group(1), int(m.group(2)))}
    m = re.fullmatch(r'([vas])\[(\d+):(\d+)\]', tok)
    if m: return {(m.group(1), r) for r in range(int(m.group(2)), int(m.group(3)) + 1)}
    if tok == 'vcc': return {('s', 'vcc')}
    if tok == 'exec': return {('s', 'exec')}
    if tok == 'm0': return {('s', 'm0')}
    return set()

TRANS = ('v_exp_f32', 'v_log_f32', 'v_rcp_f32', 'v_rsq_f32', 'v_sqrt_f32')

class I:
    def __init__(self, line):
        self.line = line
        s = line.split(';')[0].strip()
        self.label = s.endswith(':')
        self.op = ''
        self.dst = set(); self.src = set()
        if self.label or not s or s.startswith('.'): return
        p = s.split(None, 1)
        self.op = op = p[0]
        rest = p[1] if len(p) > 1 else ''
        ops = [x.strip() for x in re.split(r',(?![^\[]*\])', rest)] if rest else []
        if ops:
            last = ops[-1].split()
            ops[-1] = last[0] if last else ''
            self.mods = ' '.join(last[1:])
        else: self.mods = ''
        R = [regs_of(o) for o in ops]
        self.R = R
        self.valu = op.startswith('v_') and not op.startswith('v_mfma')
        self.mfma = op.startswith('v_mfma')
        self.vmem = op.startswith('buffer_') or op.startswith('global_')
        self.ds = op.startswith('ds_')
        self.salu = op.startswith('s_')
        self.dpp = ('_dpp' in op) or ('row_' in self.mods) or ('quad_perm' in self.mods)
        self.lds_dma = self.vmem and re.search(r'\blds\b', self.mods) is not None
        U = lambda l: set().union(*l) if l else set()
        if self.mfma:
            self.dst = R[0]; self.src = U(R[1:]); self.srcC = R[3] if len(R) > 3 else set()
            self.passes = 8 if '32x32' in op else 4
        elif self.valu:
            if op.startswith('v_permlane'):
                self.dst = R[0] | R[1]; self.src = R[0] | R[1]
            else:
                self.dst = R[0]; self.src = U(R[1:])
                if op.startswith('v_cndmask') and len(R) == 3: self.src |= {('s', 'vcc')}
                if op.startswith('v_fmac') or op.startswith('v_dot2c') or op.startswith('v_mac'): self.src |= R[0]
        elif self.vmem:
            if 'store' in op or self.lds_dma: self.src = U(R)
            elif 'atomic' in op: self.src = U(R); self.dst = R[0] if 'sc0' in self.mods else set()
            else: self.dst = R[0]; self.src = U(R[1:])
            if self.lds_dma: self.src |= {('s', 'm0')}
        elif self.ds:
            if 'read' in op: self.dst = R[0]; self.src = U(R[1:])
            else: self.src = U(R)
        elif self.salu:
            if op.startswith('s_cmp') or op.startswith('s_cbranch') or op in ('s_waitcnt', 's_nop', 's_barrier', 's_branch', 's_endpgm', 's_setprio', 's_sleep'):
                self.src = U(R)
            elif op == 's_setpc_b64': self.src = U(R)
            else:
                self.dst = R[0] if R else set(); self.src = U(R[1:])
    def ws(self):
        if self.label or not self.op: return 0
        if self.op == 's_nop':
            return int(self.line.split(';')[0].split()[1]) + 1
        return 1

def need(p, c):
    n = 0
    if not p.op or not c.op: return 0
    vd = {r for r in p.dst if r[0] in 'va'}
    sd = {r for r in p.dst if r[0] == 's'}
    if p.valu:
        isdot = p.op.startswith('v_dot')
        if c.mfma and vd & c.src: n = max(n, 3 if isdot else 2)
        if isdot and c.valu:
            if c.op == p.op:
                ab = (c.R[1] | c.R[2])
                if vd & ab: n = max(n, 3)
            elif vd & (c.src | c.dst): n = max(n, 3)
        if isdot and (c.vmem or c.ds) and vd & c.src: n = max(n, 3)
        if p.op.startswith(TRANS) and c.valu and vd & c.src: n = max(n, 1)
        if c.valu and c.dpp and vd & c.src: n = max(n, 2)
        if c.op.startswith('v_permlane') and vd & c.src: n = max(n, 2)
        if (c.op.startswith('v_readfirstlane') or c.op.startswith('v_readlane')) and vd & c.src: n = max(n, 1)
        if c.vmem and sd & c.src: n = max(n, 5)
        if c.valu and sd & c.src: n = max(n, 2)
        if ('op_sel' in p.mods and not p.op.startswith('v_pk') and not isdot) or 'sdwa' in p.op:
            if c.valu and vd & c.src: n = max(n, 1)
    if p.mfma:
        big = 12 if p.passes == 8 else 8
        if c.mfma:
            if vd & (c.R[1] | c.R[2]): n = max(n, big)
            if vd & c.srcC and not (c.srcC == p.dst and c.passes == p.passes): n = max(n, 10 if p.passes == 8 else 6)
        elif (c.valu and vd & (c.src | c.dst)) or ((c.vmem or c.ds) and vd & (c.src | c.dst)): n = max(n, big)
        if c.valu and p.srcC & c.dst: n = max(n, 7 if p.passes == 8 else 3)
    if p.salu and ('s', 'm0') in p.dst and c.vmem and c.lds_dma: n = max(n, 1)
    if p.vmem and 'store' in p.op and ('x4' in p.op or 'x3' in p.op):
        if (c.valu or c.mfma) and p.R[0] & c.dst: n = max(n, 2)
        elif (c.ds or c.vmem) and p.R[0] & c.dst: n = max(n, 1)
    return n

class Asm:
    def __init__(self):
        self.l = []; self.n = 0
    def __call__(self, s):
        for x in s.strip('\n').split('\n'):
            x = x.strip()
            if not x: continue
            self.l.append(x if x.endswith(':') else '    ' + x)
    def label(self, base):
        self.n += 1
        return f'{base}_{self.n}'
    def text(self, report=False):
        out = []; hist = []; nn = 0
        for line in self.l:
            c = I(line)
            if c.op:
                req = 0; d = 0
                for p in reversed(hist):
                    k = need(p, c)
                    if k > d: req = max(req, k - d)
                    d += p.ws()
                    if d >= 20: break
                if req:
                    nop = I(f'    s_nop {req-1}')
                    out.append(nop.line + '   ; auto'); hist.append(nop); nn += 1
                    if report: print('nop', req, 'before', line.strip())
                hist.append(c)
                if c.op in ('s_branch', 's_setpc_b64', 's_endpgm'): hist = []
                hist = hist[-24:]
            out.append(line)
        self.nops = nn
        return '\n'.join(out) + '\n'

def kern_desc(name, vgpr=512, agpr_off=256, sgpr=102):
    return f'''.section .rodata,"a"
.p2align 6
.amdhsa_kernel {name}
  .amdhsa_next_free_vgpr {vgpr}
  .amdhsa_next_free_sgpr {sgpr}
  .amdhsa_accum_offset {agpr_off}
  .amdhsa_group_segment_fixed_size 0
  .amdhsa_kernarg_size 104
  .amdhsa_user_sgpr_count 2
  .amdhsa_user_sgpr_kernarg_segment_ptr 1
  .amdhsa_system_sgpr_workgroup_id_x 1
.end_amdhsa_kernel
'''
```

```python
import sys, struct, re
from asm2 import *

def f2u(f): return struct.unpack('<I', struct.pack('<f', f))[0]

FP0 = 0x1000; FY = FP0 + 0x20000; FA = FY + 0x50000; FH = FA + 0x20000; FF = FH + 0xE0000
TIM = FF + 0x80000; DUMMY = TIM + 0x40000
UT = 0x300000; YB = 0x600000; AB = 0x900000; XB = 0xE00000; FB = 0x1300000; HB = 0x1600000
WS_SIZE = 0x2400000
SZ = 0x280000
HST = 57344
L_A = 0; L_B = 40960; L_H = 81920; L_R = 139264
L_CW = 21248; L_U = 16640; L_W1 = 84992; L_X = 153600; L_WD = 81920
K_, V_, SK_, H_, D_, Q_, WG_, WU_, WD_, OUT_, WS_ = [f's[{4*i+4}:{4*i+7}]' for i in range(11)]
TAG, W, X, II, T, S, G, FS = [f's{i}' for i in range(48, 56)]
WSB = 's[56:59]'; WSD = 's[60:63]'; W1_ = 's[64:67]'
N = 's68'; CNT = 's69'
sQB, sQH, sPF, sPH, sXH, sHD, sFH, sPA, sXA, sAD, sO1, sO2 = [f's{i}' for i in range(70, 82)]
sMA = 's82'
sMH = 's83'
sWDo = 's84'
sW1o = 's85'
t0, t1, t2, t3, t4, t5 = [f's{i}' for i in range(86, 92)]
RET = 's[92:93]'; RET2 = 's[94:95]'
TM = 's[96:97]'
ROLE = 's98'
sC2 = 's100'
LIMIT = 0x10000

class DS:
    def __init__(self, a): self.a = a; self.q = []; self.done = set()
    def op(self, txt, tag=None):
        self.a(txt); self.q.append(tag)
    def need(self, tag):
        if tag in self.done: return
        i = self.q.index(tag)
        n = len(self.q) - 1 - i
        k = min(n, 15)
        self.a(f's_waitcnt lgkmcnt({k})')
        cut = len(self.q) - k
        for t_ in self.q[:cut]: self.done.add(t_)
        self.q = self.q[cut:]

class Gen:
    def __init__(self, timers=False, stop_after=None):
        self.a = Asm(); self.timers = timers; self.stop = stop_after
        self.nst = 0
    def stamp(self, k):
        if not self.timers: return
        self.a(f'''
        s_memtime {TM}
        s_waitcnt lgkmcnt(0)
        v_writelane_b32 v71, s96, {k}
        ''')
    def stampn(self, base, mul=1):
        if not self.timers: return
        self.a(f'''
        s_memtime {TM}
        s_mul_i32 s99, {N}, {mul}
        s_add_u32 m0, s99, {base}
        s_waitcnt lgkmcnt(0)
        v_writelane_b32 v71, s96, m0
        ''')
    def poll(self, vaddr, soff, srd=WS_, exp=TAG):
        a = self.a; L = a.label('POLL'); D = a.label('PDONE')
        a(f'''
        s_mov_b32 {CNT}, {LIMIT}
        {L}:
        buffer_load_dword v14, {vaddr}, {srd}, {soff} offen sc1
        s_waitcnt vmcnt(0)
        v_cmp_ne_u32 vcc, {exp}, v14
        s_cbranch_vccz {D}
        s_sub_u32 {CNT}, {CNT}, 1
        s_cbranch_scc0 {L}
        {D}:
        ''')
    def flag(self, soff):
        self.a(f'''
        s_mov_b64 exec, 1
        buffer_store_dword v15, off, {WS_}, {soff} sc1
        s_mov_b64 exec, -1
        ''')

    def prologue(self):
        a = self.a
        a(f'''
        s_cmp_ge_u32 s2, 256
        s_cbranch_scc1 EXIT
        s_load_dwordx2 s[4:5], s[0:1], 8
        s_load_dwordx2 s[8:9], s[0:1], 16
        s_load_dwordx2 s[12:13], s[0:1], 24
        s_load_dwordx2 s[44:45], s[0:1], 96
        s_load_dwordx2 s[16:17], s[0:1], 32
        s_load_dwordx2 s[20:21], s[0:1], 40
        s_load_dwordx2 s[24:25], s[0:1], 0
        s_load_dwordx2 s[28:29], s[0:1], 56
        s_load_dwordx2 s[32:33], s[0:1], 64
        s_load_dwordx2 s[36:37], s[0:1], 72
        s_load_dwordx2 s[40:41], s[0:1], 80
        v_lshrrev_b32 v1, 6, v0
        v_and_b32 v0, 63, v0
        v_readfirstlane_b32 {W}, v1
        s_and_b32 {X}, s2, 7
        s_lshr_b32 {II}, s2, 3
        ''')
        if self.timers:
            a(f'''
            v_mov_b32 v71, 0
            s_memrealtime s[98:99]
            s_memtime {TM}
            s_waitcnt lgkmcnt(0)
            v_writelane_b32 v71, s96, 0
            v_writelane_b32 v71, s98, 63
            ''')
        sizes = [SZ, SZ, 5120, SZ, 1280, SZ, 640*1728*2, 640*1728*2, 640*1728*2, SZ, WS_SIZE]
        for i, z in enumerate(sizes):
            a(f's_mov_b32 s{4*i+6}, {z}\ns_mov_b32 s{4*i+7}, 0x00020000')
        a(f'''
        v_mul_u32_u24 v16, 205, v0
        v_lshrrev_b32 v16, 11, v16
        v_mul_u32_u24 v17, 10, v16
        v_sub_u32 v17, v0, v17
        s_lshr_b32 {t0}, {II}, 3
        s_lshl_b32 {t1}, {X}, 2
        s_add_u32 {T}, {t1}, {t0}
        s_and_b32 {S}, {II}, 7
        s_lshl_b32 {t0}, {T}, 6
        s_lshl_b32 {t1}, {W}, 4
        s_add_u32 {t0}, {t0}, {t1}
        v_lshlrev_b32 v18, 2, v16
        v_add_u32 v18, {t0}, v18           ; t
        s_mul_i32 {t2}, {S}, 160
        v_mul_u32_u24 v19, 1280, v18
        v_lshl_add_u32 v19, v17, 4, v19
        v_add_u32 v19, {t2}, v19
        v_subrev_u32 v20, 3840, v19
        v_cmp_eq_u32 vcc, 0, v18
        v_mov_b32 v21, 0x40000000
        s_mul_i32 {t2}, {S}, 640
        v_cndmask_b32 v20, v20, v21, vcc
        v_lshlrev_b32 v21, 6, v17
        v_add_u32 v21, {t2}, v21
        s_waitcnt lgkmcnt(0)
        s_load_dword {TAG}, s[44:45], 0
        s_mov_b32 exec_lo, -1
        s_mov_b32 exec_hi, 0xff
        ''')
        for r in range(3): a(f'buffer_load_dwordx4 v[{72+4*r}:{75+4*r}], v20, {K_}, 0 offen offset:{1280*r}')
        for r in range(4): a(f'buffer_load_dwordx4 v[{84+4*r}:{87+4*r}], v19, {K_}, 0 offen offset:{1280*r}')
        for r in range(4): a(f'buffer_load_dwordx4 v[{100+4*r}:{103+4*r}], v19, {V_}, 0 offen offset:{1280*r}')
        for r in range(4): a(f'buffer_load_dwordx4 v[{116+4*r}:{119+4*r}], v21, {SK_}, 0 offen offset:{16*r}')
        a('s_mov_b64 exec, -1')
        a(f'''
        s_and_b32 {t0}, {X}, 1
        s_lshl_b32 {t0}, {t0}, 2
        s_and_b32 {t1}, {II}, 3
        s_add_u32 {G}, {t0}, {t1}
        s_lshr_b32 {t0}, {X}, 1
        s_mul_i32 {t0}, {t0}, 7
        s_lshr_b32 {t1}, {II}, 2
        s_add_u32 {FS}, {t0}, {t1}
        s_mov_b32 {ROLE}, 0
        s_cmp_lt_u32 {FS}, 27
        s_cselect_b32 {ROLE}, 1, 0
        s_cmp_lt_u32 {II}, 20
        s_cselect_b32 {t0}, 2, 0
        s_or_b32 {ROLE}, {ROLE}, {t0}
        s_cmp_ge_u32 {II}, 28
        s_cselect_b32 {ROLE}, 4, {ROLE}
        s_mov_b32 s56, s44
        s_mov_b32 s57, s45
        s_mov_b32 s58, 0
        s_mov_b32 s59, 0x00020000
        s_mov_b32 s60, s44
        s_mov_b32 s61, s45
        s_mov_b32 s62, 0
        s_mov_b32 s63, 0x00020000
        s_bitcmp1_b32 {W}, 0
        s_cselect_b32 s64, s32, s28
        s_cselect_b32 s65, s33, s29
        s_mov_b32 s66, {640*1728*2}
        s_mov_b32 s67, 0x00020000
        s_mul_i32 {sMA}, {W}, 10240
        s_mul_i32 {sMH}, {W}, 14336
        s_add_u32 {sMH}, {sMH}, {L_H}
        ''')
        a(f'''
        v_lshlrev_b32 v1, 4, v0
        v_and_b32 v22, 31, v0              ; t
        v_lshrrev_b32 v23, 5, v0           ; h
        v_lshrrev_b32 v24, 3, v22
        v_mul_u32_u24 v24, 10240, v24
        v_and_b32 v25, 7, v22
        v_lshl_add_u32 v24, v25, 7, v24
        v_bfe_u32 v25, v22, 1, 3           ; swz
        v_xor_b32 v25, v25, v23
        ''')
        for q in range(4):
            a(f'v_xor_b32 v26, {2*q}, v25\nv_lshl_add_u32 v{2+q}, v26, 4, v24')
        a(f'''
        v_lshrrev_b32 v24, 3, v0
        s_lshl_b32 {t0}, {W}, 3
        v_add_u32 v24, {t0}, v24
        v_bfe_u32 v25, v24, 1, 3
        v_and_b32 v26, 7, v0
        v_xor_b32 v25, v25, v26
        v_mul_u32_u24 v24, 1280, v24
        v_lshl_add_u32 v6, v25, 4, v24
        v_add_u32 v7, {sMH}, v1
        v_lshrrev_b32 v24, 4, v22
        v_mul_u32_u24 v24, {HST}, v24
        v_lshl_add_u32 v24, v23, 8, v24
        v_and_b32 v25, 15, v0
        v_lshl_add_u32 v8, v25, 4, v24
        s_cmp_eq_u32 {W}, 3
        s_cselect_b32 {t0}, 23, 27
        v_min_u32 v9, {t0}, v0
        v_lshlrev_b32 v9, 7, v9
        v_and_b32 v24, 1, v0
        v_bfe_u32 v26, v0, 1, 1
        v_lshl_add_u32 v24, v26, 3, v24
        s_lshl_b32 {t0}, {G}, 2
        s_lshr_b32 {t1}, {W}, 1
        s_add_u32 {t0}, {t0}, {t1}
        s_lshl_b32 {t0}, {t0}, 2
        s_and_b32 {t1}, {W}, 1
        s_lshl_b32 {t1}, {t1}, 1
        s_add_u32 {t0}, {t0}, {t1}
        v_add_u32 v24, {t0}, v24
        v_lshlrev_b32 v10, 7, v24
        v_mul_u32_u24 v24, 336, v25
        v_lshrrev_b32 v26, 4, v0
        v_lshl_add_u32 v24, v26, 4, v24
        s_mul_i32 {t0}, {W}, 5376
        s_add_u32 {t0}, {t0}, {L_R}
        v_add_u32 v11, {t0}, v24
        s_lshl_b32 {t0}, {W}, 2
        v_add_u32 v24, {t0}, v16
        v_min_u32 v24, 15, v24
        v_mul_u32_u24 v26, 336, v24
        v_lshl_add_u32 v26, v17, 5, v26
        v_add_u32 v12, {L_R}, v26
        v_mul_u32_u24 v26, 1280, v24
        v_lshl_add_u32 v13, v17, 4, v26
        s_waitcnt lgkmcnt(0)
        s_mul_i32 {TAG}, {TAG}, 0x9E3779B1
        s_add_u32 {TAG}, {TAG}, 0x7F4A7C15
        v_mov_b32 v15, {TAG}
        ''')

    def p0(self):
        a = self.a
        a(f'''
        s_mul_i32 {t0}, {X}, 20
        s_add_u32 {t0}, {t0}, {II}
        s_lshl_b32 {t0}, {t0}, 2
        s_add_u32 {t0}, {t0}, {W}
        s_lshl_b32 {t1}, {t0}, 12
        v_add_u32 v38, {t1}, v1
        v_subrev_u32 v39, 8, v38
        s_lshl_b32 {t1}, {t0}, 1
        v_mov_b32 v36, {t1}
        v_mov_b32 v40, 0
        v_mov_b32 v41, 0
        s_waitcnt vmcnt(0)
        ''')
        self.stamp(1)
        a(f'''
        s_bitcmp1_b32 {ROLE}, 1
        s_cbranch_scc0 P0_NOH
        s_mov_b64 exec, -2
        buffer_load_dwordx2 v[40:41], v39, {H_}, 0 offen
        s_mov_b64 exec, -1
        ''')
        for y in range(4):
            if y: a(f'buffer_load_dwordx2 v[{40+6*y}:{41+6*y}], v39, {H_}, 0 offen offset:{1024*y}')
            a(f'buffer_load_dwordx4 v[{42+6*y}:{45+6*y}], v38, {H_}, 0 offen offset:{1024*y}')
        a(f'''
        buffer_load_ushort v37, v36, {D_}, 0 offen
        P0_NOH:
        s_mov_b32 {t2}, 0x05040100
        s_mov_b32 {t3}, 0x07060302
        s_lshl_b32 {t0}, {W}, 1
        v_lshrrev_b32 v22, 1, v16
        v_add_u32 v22, {t0}, v22
        v_and_b32 v23, 7, v17
        v_xor_b32 v22, v22, v23
        v_lshlrev_b32 v22, 4, v22
        v_and_b32 v23, 1, v16
        v_lshl_add_u32 v22, v23, 3, v22
        v_lshl_add_u32 v22, v17, 10, v22
        v_add_u32 v22, {L_X}, v22
        s_mov_b32 exec_lo, -1
        s_mov_b32 exec_hi, 0xff
        ''')
        for j in range(8):
            d = j >> 1; sel = t3 if j & 1 else t2
            P = 132; U = 140 + 8 * (j & 1); VV = 156
            for s_ in range(1, 7):
                a(f'v_perm_b32 v{P+s_}, v{72+4*(s_-1)+d}, v{72+4*s_+d}, {sel}')
            for r in range(4):
                a(f'v_dot2_f32_bf16 v{U+r}, v{P+r+1}, v{117+2*j}, 0')
            for r in range(4):
                a(f'v_dot2_f32_bf16 v{U+r}, v{P+r+3}, v{116+2*j}, v{U+r}')
            for r in range(4):
                if j & 1: a(f'v_and_b32 v{VV+r}, 0xffff0000, v{100+4*r+d}')
                else: a(f'v_lshlrev_b32 v{VV+r}, 16, v{100+4*r+d}')
            a(f'''
            v_pk_mul_f32 v[{U}:{U+1}], v[{U}:{U+1}], v[{VV}:{VV+1}]
            v_pk_mul_f32 v[{U+2}:{U+3}], v[{U+2}:{U+3}], v[{VV+2}:{VV+3}]
            v_cvt_pk_bf16_f32 v{U+4}, v{U}, v{U+1}
            v_cvt_pk_bf16_f32 v{U+5}, v{U+2}, v{U+3}
            ds_write_b64 v22, v[{U+4}:{U+5}] offset:{128*j}
            ''')
        a(f'''
        s_mov_b64 exec, -1
        s_mul_i32 {t0}, {W}, 20
        v_lshrrev_b32 v22, 3, v0
        v_add_u32 v22, {t0}, v22
        v_and_b32 v23, 7, v0
        ''')
        for y in range(3):
            a(f'''
            v_add_u32 v24, {8*y}, v22
            v_bfe_u32 v25, v24, 3, 3
            v_xor_b32 v25, v25, v23
            v_lshlrev_b32 v25, 4, v25
            v_lshl_add_u32 v25, v24, 7, v25
            v_add_u32 v{26+y}, {L_X}, v25
            ''')
        a(f'''
        s_mul_i32 {t0}, {S}, 80
        v_add_u32 v22, {t0}, v22
        v_lshlrev_b32 v22, 12, v22
        v_lshl_add_u32 v22, v23, 4, v22
        s_lshl_b32 {t0}, {T}, 7
        s_add_u32 {t0}, {t0}, {UT}
        s_add_u32 {t1}, {t0}, 0x8000
        s_add_u32 {t2}, {t0}, 0x10000
        s_waitcnt lgkmcnt(0)
        s_barrier
        ds_read_b128 v[72:75], v26
        ds_read_b128 v[76:79], v27
        s_mov_b32 exec_hi, 0
        ds_read_b128 v[80:83], v28
        s_mov_b32 exec_hi, -1
        s_waitcnt lgkmcnt(2)
        buffer_store_dwordx4 v[72:75], v22, {WS_}, {t0} offen sc1
        s_waitcnt lgkmcnt(1)
        buffer_store_dwordx4 v[76:79], v22, {WS_}, {t1} offen sc1
        s_waitcnt lgkmcnt(0)
        s_mov_b32 exec_hi, 0
        buffer_store_dwordx4 v[80:83], v22, {WS_}, {t2} offen sc1
        s_mov_b32 exec_hi, -1
        s_lshl_b32 {t4}, {S}, 2
        s_add_u32 {t4}, {t4}, {W}
        s_lshl_b32 {t4}, {t4}, 5
        s_add_u32 {t4}, {t4}, {T}
        s_lshl_b32 {t4}, {t4}, 7
        s_add_u32 {t4}, {t4}, {FP0}
        ''')

    def w1_setup(self):
        self.a(f'''
        v_lshrrev_b32 v66, 3, v0
        v_bfe_u32 v67, v0, 4, 1
        v_lshlrev_b32 v67, 1, v67
        s_and_b32 {t0}, {W}, 1
        s_lshl_b32 {t0}, {t0}, 2
        v_or_b32 v67, {t0}, v67
        v_and_b32 v68, 7, v0
        v_xor_b32 v67, v67, v68
        v_mul_u32_u24 v66, 3456, v66
        v_lshl_add_u32 v64, v67, 4, v66
        s_lshr_b32 {t0}, {W}, 1
        s_mul_i32 {t0}, {t0}, {8*3456}
        s_lshl_b32 {sW1o}, {FS}, 7
        s_add_u32 {sW1o}, {sW1o}, {t0}
        v_lshrrev_b32 v66, 4, v0
        v_and_b32 v67, 1, v66              ; mat
        v_lshrrev_b32 v66, 1, v66          ; h
        v_lshlrev_b32 v66, 11, v66
        v_lshl_add_u32 v66, v67, 10, v66
        v_bfe_u32 v68, v0, 2, 2            ; r
        v_lshl_add_u32 v66, v68, 7, v66
        v_lshrrev_b32 v68, 1, v68
        v_lshl_add_u32 v68, v67, 1, v68    ; sigma
        v_xor_b32 v68, {W}, v68
        v_lshl_add_u32 v66, v68, 5, v66
        v_and_b32 v68, 3, v0
        v_lshl_add_u32 v66, v68, 3, v66
        v_add_u32 v65, {L_W1}, v66
        ''')
    def w1_issue(self, nks):
        a = self.a
        a(f's_lshl_b32 {t0}, {W}, 10\ns_add_u32 m0, {t0}, {L_W1}')
        for i in range(nks):
            a(f'''
            buffer_load_dwordx4 v64, {W1_}, {sW1o} offen lds
            s_add_u32 m0, m0, 4096
            s_add_u32 {sW1o}, {sW1o}, {16*3456}
            ''')
    def w1_consume(self, ks0, nks):
        a = self.a
        a('s_waitcnt vmcnt(0)\ns_barrier')
        for i in range(nks):
            r = 72 + 4 * (ks0 + i)
            a(f'ds_read_b64_tr_b16 v[{r}:{r+1}], v65 offset:{4096*i}')
            a(f'ds_read_b64_tr_b16 v[{r+2}:{r+3}], v65 offset:{4096*i+512}')
        a('s_waitcnt lgkmcnt(0)\ns_barrier')
    @staticmethod
    def wd_reg(ks, j):
        f = ks * 5 + j
        return f'a[{4*f}:{4*f+3}]' if f < 64 else f'v[{232+4*(f-64)}:{235+4*(f-64)}]'
    @staticmethod
    def wd_half(ks, j, e):
        f = ks * 5 + j
        return f'a[{4*f+2*e}:{4*f+2*e+1}]' if f < 64 else f'v[{232+4*(f-64)+2*e}:{233+4*(f-64)+2*e}]'
    def wd_addr(self):
        a = self.a
        for y in range(5):
            a(f'''
            v_add_u32 v70, {64*y}, v0
            v_mul_u32_u24 v14, 6554, v70
            v_lshrrev_b32 v14, 16, v14
            v_mul_u32_u24 v69, 10, v14
            v_sub_u32 v70, v70, v69
            v_mul_u32_u24 v14, 1280, v14
            v_lshl_add_u32 v{64+y}, v70, 4, v14
            ''')
        a(f'''
        v_lshrrev_b32 v70, 5, v0
        v_bfe_u32 v14, v0, 4, 1
        v_lshlrev_b32 v70, 2, v70
        v_add_u32 v70, v70, v14
        v_bfe_u32 v14, v0, 2, 2
        v_lshl_add_u32 v70, v70, 2, v14
        v_mul_u32_u24 v70, 160, v70
        v_and_b32 v14, 3, v0
        v_lshl_add_u32 v70, v14, 3, v70
        s_mul_i32 {t5}, {W}, 20480
        s_add_u32 {t5}, {t5}, {L_WD}
        v_add_u32 v69, {t5}, v70
        ''')
    def wd_issue(self, nks):
        a = self.a
        a(f's_mov_b32 m0, {t5}')
        for i in range(nks):
            for y in range(5):
                a(f'buffer_load_dwordx4 v{64+y}, {WD_}, {sWDo} offen lds\ns_add_u32 m0, m0, 1024')
            a(f's_add_u32 {sWDo}, {sWDo}, {32*1280}')
    def wd_subs(self):
        a = self.a
        bt = [4, 4, 4, 2]
        a('WD_I0:')
        a(f'''
        s_mul_i32 {sWDo}, {W}, {448*1280}
        s_mul_i32 {t0}, {S}, 160
        s_add_u32 {sWDo}, {sWDo}, {t0}
        ''')
        self.wd_addr(); self.wd_issue(4)
        a(f's_setpc_b64 {RET2}')
        for k in range(4):
            a(f'WD_C{k}:')
            self.wd_addr()
            a('s_waitcnt vmcnt(0)')
            for i in range(bt[k]):
                for j in range(5):
                    for e in range(2):
                        a(f'ds_read_b64_tr_b16 {self.wd_half(4*k+i, j, e)}, v69 offset:{5120*i + 32*j + 1280*e}')
            a('s_waitcnt lgkmcnt(0)')
            if k < 3: self.wd_issue(bt[k+1])
            a(f's_setpc_b64 {RET2}')

    def hbuild(self):
        a = self.a
        a(f'''
        s_mul_i32 {t0}, {W}, {L_CW}
        s_add_u32 {t1}, {t0}, 4080
        v_sub_u32 v38, {t1}, v1
        v_subrev_u32 v38, 3072, v38
        s_mov_b32 {t2}, 0xffff
        v_mov_b32 v16, 0
        v_mov_b32 v17, 0
        v_mov_b32 v18, 0
        v_mov_b32 v19, 0
        v_lshrrev_b32 v39, 1, v1
        s_add_u32 {t1}, {t0}, {L_U}
        v_add_u32 v39, {t1}, v39
        ds_write_b64 v39, v[16:17]
        v_bfe_u32 v39, v0, 1, 2
        v_mul_u32_u24 v39, 4160, v39
        v_and_b32 v36, 1, v0
        v_lshl_add_u32 v39, v36, 4, v39
        s_add_u32 {t1}, {t0}, 4096
        v_add_u32 v39, {t1}, v39
        ds_write_b128 v39, v[16:19]
        ''')
        for y in range(4):
            D = lambda k: f'v{42+6*y+k}'
            for s_ in range(4):
                r = 16 + 4 * s_
                for o in range(4):
                    if s_ == 0: a(f'v_alignbit_b32 v{r+o}, {D(3-o)}, {D(3-o)}, 16')
                    if s_ == 1: a(f'v_bfi_b32 v{r+o}, {t2}, {D(3-o)}, {D(2-o)}')
                    if s_ == 2: a(f'v_alignbit_b32 v{r+o}, {D(2-o)}, {D(2-o)}, 16')
                    if s_ == 3: a(f'v_bfi_b32 v{r+o}, {t2}, {D(2-o)}, {D(1-o)}')
                a(f'ds_write_b128 v38, v[{r}:{r+3}] offset:{4160*s_ + 3072 - 1024*y}')
        a(f'''
        v_and_b32 v16, 15, v0              ; m / n
        v_lshrrev_b32 v17, 4, v0           ; q
        v_lshrrev_b32 v18, 3, v16
        v_add_u32 v18, 2, v18
        v_cmp_eq_u32 vcc, v17, v18
        v_and_b32 v19, 1, v0
        v_lshlrev_b32 v19, 4, v19
        v_lshlrev_b32 v37, v19, v37
        v_cndmask_b32 v37, 0, v37, vcc
        v_bfe_u32 v19, v0, 1, 2
        ''')
        for d in range(4):
            a(f'v_cmp_eq_u32 vcc, {d}, v19\ns_nop 1\nv_cndmask_b32 v{32+d}, 0, v37, vcc')
        a(f'''
        v_sub_u32 v18, 3, v16
        v_and_b32 v18, 3, v18
        v_mul_u32_u24 v18, 4160, v18
        v_lshl_add_u32 v18, v17, 4, v18
        v_lshrrev_b32 v19, 2, v16
        v_lshlrev_b32 v19, 3, v19
        v_sub_u32 v18, v18, v19
        s_add_u32 {t1}, {t0}, 24
        v_add_u32 v36, {t1}, v18
        v_lshlrev_b32 v18, 5, v16
        v_lshl_add_u32 v18, v17, 4, v18
        s_add_u32 {t1}, {t0}, {L_U + 32}
        v_add_u32 v39, {t1}, v18
        s_lshl_b32 {t1}, {W}, 2
        v_add_u32 v18, {t1}, v17
        v_xor_b32 v18, v18, v16
        v_lshlrev_b32 v18, 3, v18
        v_lshl_add_u32 v18, v16, 7, v18
        v_add_u32 v66, {L_X}, v18
        v_bfe_u32 v18, v0, 1, 1
        v_lshl_add_u32 v18, v17, 1, v18
        s_lshl_b32 {t1}, {W}, 3
        v_add_u32 v18, {t1}, v18
        v_bfe_u32 v19, v0, 2, 2
        v_and_b32 v20, 1, v0
        v_lshl_add_u32 v19, v19, 2, v20
        v_and_b32 v20, 15, v18
        v_xor_b32 v19, v19, v20
        v_lshlrev_b32 v19, 3, v19
        v_lshl_add_u32 v19, v18, 7, v19
        v_add_u32 v67, {L_X}, v19
        v_xor_b32 v69, 16, v67
        v_lshrrev_b32 v18, 3, v0
        v_mul_u32_u24 v18, 20480, v18
        v_and_b32 v19, 7, v0
        v_lshl_add_u32 v68, v19, 4, v18
        v_and_b32 v70, 31, v0
        v_lshlrev_b32 v70, 7, v70
        s_waitcnt lgkmcnt(0)
        ''')
        for b in range(32):
            a(f'ds_read_b64 a[{4*b}:{4*b+1}], v36 offset:{64*(63-b)}')
            a(f'ds_read_b64 a[{4*b+2}:{4*b+3}], v36 offset:{64*(63-b)+8}')

    def conv(self):
        a = self.a
        a(f'''
        s_mul_i32 {t0}, {II}, 52
        s_lshr_b32 {t0}, {t0}, 8           ; i/5
        s_lshl_b32 {t1}, {X}, 2
        s_add_u32 {t0}, {t0}, {t1}
        s_lshl_b32 {t0}, {t0}, 12
        s_add_u32 {t0}, {t0}, {FP0}
        s_mul_i32 {t1}, {X}, 20
        s_add_u32 {t1}, {t1}, {II}         ; cw
        s_lshl_b32 {t2}, {t1}, 2
        s_add_u32 {t2}, {t2}, {W}
        s_lshl_b32 {t2}, {t2}, 12
        s_add_u32 {t2}, {t2}, {UT}
        s_mul_i32 {t3}, {W}, {L_CW}
        s_add_u32 m0, {t3}, {L_U + 512}
        s_mul_i32 {t3}, {W}, 1280
        s_add_u32 {t3}, {t3}, {t1}
        s_lshl_b32 {t3}, {t3}, 7
        s_add_u32 {sO1}, {t3}, {YB}
        s_mul_i32 {t3}, {W}, 160
        s_add_u32 {t3}, {t3}, {t1}
        s_lshl_b32 {t3}, {t3}, 7
        s_add_u32 {sO2}, {t3}, {FY}
        ''')
        self.poll('v70', t0)
        self.stamp(4)
        for y in range(4):
            a(f'buffer_load_dwordx4 v1, {WS_}, {t2} offen offset:{1024*y} sc1 lds')
        a('s_waitcnt vmcnt(0)')
        self.stamp(5)
        ds = DS(a)
        Areg = {b: f'a[{4*b}:{4*b+3}]' for b in range(32)}
        Breg = {e: f'a[{128+4*(e+7)}:{131+4*(e+7)}]' for e in range(-7, 25)}
        def rng(r):
            m = re.fullmatch(r'([av])\[(\d+):(\d+)\]', r); return m.group(1), int(m.group(2))
        def ldA(b):
            k, r = rng(Areg[b])
            return [(f'ds_read_b64 {k}[{r}:{r+1}], v36 offset:{64*(63-b)}', None),
                    (f'ds_read_b64 {k}[{r+2}:{r+3}], v36 offset:{64*(63-b)+8}', ('A', b))]
        def ldB(e): return [(f'ds_read_b128 {Breg[e]}, v39 offset:{64*(e+7)}', ('B', e))]
        for b in range(32): ds.done.add(('A', b))
        acc = {0: 16, 1: 20, 2: 24, 3: 28, 4: 16, 5: 20, 6: 48, 7: 52}
        def mf(j, b, e):
            if b is not None: ds.need(('A', b))
            ds.need(('B', e))
            c = f'v[{acc[j]}:{acc[j]+3}]'
            if b is None: a(f'v_mfma_f32_16x16x32_bf16 {c}, v[32:35], {Breg[e]}, 0')
            else: a(f'v_mfma_f32_16x16x32_bf16 {c}, {Areg[b]}, {Breg[e]}, {c}')
        def run(mfs, fill, per=1):
            fill = list(fill)
            for m_ in mfs:
                mf(*m_)
                for _ in range(per):
                    if fill: fill.pop(0)()
            while fill: fill.pop(0)()
        L = lambda items: [(lambda it=it: ds.op(*it)) for it in items]
        nop = lambda: None
        def epi(c, tiles, tmp):
            F = []
            buf = (c & 1) * 4096
            for jj, j in enumerate(tiles):
                r = acc[j]
                F.append(lambda r=r, jj=jj: a(f'v_cvt_pk_bf16_f32 v{tmp+2*jj}, v{r}, v{r+1}\nv_cvt_pk_bf16_f32 v{tmp+2*jj+1}, v{r+2}, v{r+3}'))
                F.append(lambda jj=jj: ds.op(f'ds_write_b64 v66, v[{tmp+2*jj}:{tmp+2*jj+1}] offset:{buf + 2048*jj}', ('W', c, jj)))
            return F
        def epi2(c, tmp):
            buf = (c & 1) * 4096
            F = [lambda: ds.op(f'ds_read_b64_tr_b16 v[{tmp}:{tmp+1}], v67 offset:{buf}', None),
                 lambda: ds.op(f'ds_read_b64_tr_b16 v[{tmp+2}:{tmp+3}], v69 offset:{buf}', ('R', c))]
            return F
        def ystore(c, tmp):
            def f():
                ds.need(('R', c))
                a(f'buffer_store_dwordx4 v[{tmp}:{tmp+3}], v68, {WS_}, {sO1} offen sc1\ns_add_u32 {sO1}, {sO1}, {32*20480}')
            return f
        def bar(tag):
            def f():
                ds.need(tag); a('s_barrier')
            return f
        def yflag(n):
            def f():
                a(f's_waitcnt vmcnt({n})'); self.flag(sO2); a(f's_add_u32 {sO2}, {sO2}, {640*128}')
            return f
        def w1i(n):
            F = [lambda: a(f's_lshl_b32 {t0}, {W}, 10\ns_add_u32 m0, {t0}, {L_W1}')]
            for i in range(n):
                F.append(lambda: a(f'buffer_load_dwordx4 v64, {W1_}, {sW1o} offen lds\ns_add_u32 m0, m0, 4096\ns_add_u32 {sW1o}, {sW1o}, {16*3456}'))
            return F
        def w1c(ks0, n):
            F = []
            for i in range(n):
                r = 72 + 4 * (ks0 + i)
                o = 4096 * ((ks0 + i) & 15)
                F += L([(f'ds_read_b64_tr_b16 v[{r}:{r+1}], v65 offset:{o}', None),
                        (f'ds_read_b64_tr_b16 v[{r+2}:{r+3}], v65 offset:{o+512}', ('W1', ks0 + i))])
            return F
        l0 = []
        for r in range(8): l0 += ldB(-r) + ldB(8 - r)
        l1 = []
        for r in range(8): l1 += ldB(16 - r) + ldB(24 - r)
        for it in l0[:4]: ds.op(*it)
        m0_ = [(0, None, 0), (1, None, 8)]
        for r in range(8): m0_ += [(0, r, -r), (1, r, 8 - r), (1, 8 + r, -r)]
        run(m0_, L(l0[4:] + l1))
        self.stamp(6)
        slots = [f'v[{200+4*k}:{203+4*k}]' for k in range(8)]
        def extras(r, sl):
            it = []
            for k in range(4):
                Areg[8*(4+k) + r] = sl[k]; Breg[8*(4+k) - r] = sl[4+k]
            for k in range(4): it += ldB(8*(4+k) - r) + ldA(8*(4+k) + r)
            return it
        m1 = [(2, None, 16), (3, None, 24)]
        for r in range(8):
            for j in (2, 3):
                for be in range(j + 1): m1.append((j, 8*be + r, 8*(j-be) - r))
        F = [nop, nop] + epi(0, (0, 1), 56) + [nop, nop, bar(('W', 0, 1))] + epi2(0, 60) + [nop]*4 + [ystore(0, 60)]
        F += w1i(16) + L(extras(0, slots)) + [nop] * 14 + [yflag(16)]
        run(m1, F)
        self.stamp(7)
        slots1 = [f'v[{232+4*k}:{235+4*k}]' for k in range(6)] + ['v[40:43]', 'v[44:47]']
        for r in range(8):
            mm = []
            prs = [(be, ga) for be in range(8) for ga in range(8) if 4 <= be + ga <= 7]
            prs.sort(key=lambda p: max(p))
            if r == 0:
                mm += [(j, None, 8*j) for j in (4, 5, 6, 7)]
            mm += [(be + ga, 8*be + r, 8*ga - r) for be, ga in prs]
            F = []
            if r == 0: F += [nop, nop] + epi(1, (2, 3), 56) + [nop, nop, bar(('W', 1, 1))] + epi2(1, 60) + [nop]*3 + [ystore(1, 60)]
            if r < 7:
                if r == 0: sl = slots1
                else:
                    p = r - 1
                    sl = [Areg[8*k + p] for k in range(4)] + [Breg[8*k - p] for k in range(4)]
                F += L(extras(r + 1, sl))
            if r == 2: F += [yflag(0), lambda: a('s_barrier')] + w1c(16, 6)
            if r == 3: F += w1c(22, 7)
            if r == 4: F += w1c(29, 3) + [bar(('W1', 31))] + w1i(8)[:7]
            if r == 5: F += w1i(8)[7:]
            run(mm, F)
        self.stamp(8)
        for f in epi(2, (4, 5), 56) + epi(3, (6, 7), 60): f()
        bar(('W', 3, 1))()
        for f in epi2(2, 56) + epi2(3, 60) + [ystore(2, 56), ystore(3, 60)]: f()
        a('s_waitcnt vmcnt(2)\ns_barrier')
        for f in w1c(32, 8): f()
        yflag(1)(); yflag(1)()
        a('s_waitcnt lgkmcnt(0)\ns_barrier')
        self.stamp(9)

    def ln_setup(self):
        a = self.a
        a(f'''
        s_lshl_b32 {t0}, {X}, 2
        s_add_u32 {G}, {t0}, {II}
        s_sub_u32 {G}, {G}, 28             ; TL
        v_and_b32 v16, 3, v0
        s_lshl_b32 {t0}, {W}, 2
        v_add_u32 v16, {t0}, v16
        v_lshrrev_b32 v17, 2, v0           ; kappa
        v_mul_u32_u24 v18, 160, v16
        ''')
        for u in range(5):
            a(f'''
            v_add_u32 v19, {16*u}, v17
            v_mul_u32_u24 v20, 205, v19
            v_lshrrev_b32 v20, 11, v20
            v_mul_u32_u24 v20, {2560-160}, v20
            v_lshl_add_u32 v20, v19, 4, v20
            v_add_u32 v{172+u}, v20, v18
            ''')
        a(f'''
        v_mul_u32_u24 v18, 1280, v16
        v_lshl_add_u32 v177, v17, 4, v18
        v_and_b32 v18, 7, v16
        v_lshlrev_b32 v18, 4, v18
        v_lshl_add_u32 v18, v17, 8, v18
        v_lshrrev_b32 v19, 3, v16
        v_lshl_add_u32 v178, v19, 3, v18
        v_min_u32 v18, 39, v0
        s_mul_i32 {t0}, {W}, 40
        v_add_u32 v18, {t0}, v18
        v_lshlrev_b32 v179, 7, v18
        v_and_b32 v18, 7, v0
        s_lshl_b32 {t0}, {W}, 3
        v_add_u32 v18, {t0}, v18
        v_lshlrev_b32 v180, 7, v18
        ''')
    def red(self, r):
        self.a(f'''
        v_add_f32_dpp v{r}, v{r}, v{r} row_ror:4 row_mask:0xf bank_mask:0xf
        v_add_f32_dpp v{r}, v{r}, v{r} row_ror:8 row_mask:0xf bank_mask:0xf
        v_mov_b32 v{r+1}, v{r}
        v_permlane16_swap_b32 v{r}, v{r+1}
        v_add_f32 v{r}, v{r}, v{r+1}
        v_mov_b32 v{r+1}, v{r}
        v_permlane32_swap_b32 v{r}, v{r+1}
        v_add_f32 v{r}, v{r}, v{r+1}
        ''')
    def ln_subs(self):
        a = self.a
        P = lambda k: f'v[{72+2*k}:{73+2*k}]'
        a('LN_ST:')
        a(f'v_pk_add_f32 v[182:183], {P(0)}, {P(1)}\nv_pk_add_f32 v[184:185], {P(2)}, {P(3)}')
        for k in range(4, 20):
            r = 182 + 2 * (k & 1)
            a(f'v_pk_add_f32 v[{r}:{r+1}], v[{r}:{r+1}], {P(k)}')
        a('v_pk_add_f32 v[182:183], v[182:183], v[184:185]\nv_add_f32 v182, v182, v183')
        self.red(182)
        a(f'v_mul_f32 v182, {hex(f2u(1/640))}, v182')
        for k in range(20):
            a(f'v_pk_add_f32 {P(k)}, {P(k)}, v[182:183] op_sel_hi:[1,0] neg_lo:[0,1] neg_hi:[0,1]')
            if k >= 1:
                j = k - 1; r = 184 + 2 * (j & 1)
                if j < 2: a(f'v_pk_mul_f32 v[{r}:{r+1}], {P(j)}, {P(j)}')
                else: a(f'v_pk_fma_f32 v[{r}:{r+1}], {P(j)}, {P(j)}, v[{r}:{r+1}]')
        a(f'''
        v_pk_fma_f32 v[186:187], {P(19)}, {P(19)}, v[186:187]
        v_pk_add_f32 v[184:185], v[184:185], v[186:187]
        v_add_f32 v184, v184, v185
        ''')
        self.red(184)
        a(f'''
        v_mov_b32 v185, {hex(f2u(1e-5))}
        v_fmac_f32 v185, {hex(f2u(1/640))}, v184
        v_rsq_f32 v184, v185
        s_nop 0
        s_setpc_b64 {RET2}
        ''')
        a('LN_FIN:')
        for k in range(20):
            r = 188 + 2 * (k & 3)
            a(f'''
            v_lshlrev_b32 v{r}, 16, v{112+k}
            v_and_b32 v{r+1}, 0xffff0000, v{112+k}
            v_pk_fma_f32 v[{r}:{r+1}], v[{r}:{r+1}], v[184:185], 1.0 op_sel_hi:[1,0,0]
            v_pk_fma_f32 {P(k)}, {P(k)}, v[{r}:{r+1}], v[182:183] op_sel_hi:[1,1,0]
            ''')
        for k in range(20): a(f'v_cvt_pk_bf16_f32 v{132+k}, v{72+2*k}, v{73+2*k}')
        a(f's_call_b64 {RET2}, LN_ST')
        for k in range(20):
            a(f'v_pk_mul_f32 {P(k)}, {P(k)}, v[184:185] op_sel_hi:[1,0]')
            if k: a(f'v_cvt_pk_bf16_f32 v{152+k-1}, v{72+2*k-2}, v{73+2*k-2}')
            if k % 4 == 1 and k > 4:
                u = k // 4 - 1
                a(f'buffer_store_dwordx4 v[{152+4*u}:{155+4*u}], v177, {WS_}, {sO2} offen offset:{256*u} sc1')
        a(f'''
        v_cvt_pk_bf16_f32 v171, v110, v111
        buffer_store_dwordx4 v[168:171], v177, {WS_}, {sO2} offen offset:1024 sc1
        ''')
        for u in range(5):
            a(f'buffer_store_dwordx4 v[{132+4*u}:{135+4*u}], v{172+u}, {WS_}, {sO1} offen sc1')
        a('s_waitcnt vmcnt(0)')
        self.flag(sFH)
        a(f's_setpc_b64 {RET}')
    def ln_unpack(self, src):
        for k in range(20):
            self.a(f'v_lshlrev_b32 v{72+2*k}, 16, v{src+k}\nv_and_b32 v{73+2*k}, 0xffff0000, v{src+k}')
    def ln_yload(self):
        a = self.a
        for u in range(5):
            for h in range(2):
                a(f'buffer_load_dwordx2 v[{112+4*u+2*h}:{113+4*u+2*h}], v178, {WS_}, {t2} offen offset:{128*h} sc1')
            if u < 4: a(f's_add_u32 {t2}, {t2}, 4096')
    def ln_offs(self, layer):
        self.a(f'''
        s_lshl_b32 {t1}, {N}, 5
        s_add_u32 {t1}, {t1}, {G}
        s_mul_i32 {t0}, {t1}, 20480
        s_add_u32 {sO1}, {t0}, {XB + layer*SZ}
        s_add_u32 {sO2}, {t0}, {AB + layer*SZ}
        s_add_u32 {t2}, {t0}, {YB}
        s_lshl_b32 {t3}, {t1}, 2
        s_add_u32 {t3}, {t3}, {W}
        s_lshl_b32 {t3}, {t3}, 7
        s_add_u32 {sFH}, {t3}, {FA + layer*4*128*128}
        ''')
    def ln1(self):
        a = self.a
        self.ln_offs(0)
        for u in range(5): a(f'buffer_load_dwordx4 v[{132+4*u}:{135+4*u}], v177, {Q_}, {t0} offen offset:{256*u}')
        a(f'''
        s_lshl_b32 {t3}, {N}, 2
        s_lshr_b32 {t4}, {G}, 3
        s_add_u32 {t3}, {t3}, {t4}
        s_mul_i32 {t3}, {t3}, {160*128}
        s_add_u32 {t3}, {t3}, {FY}
        s_waitcnt vmcnt(0)
        ''')
        self.ln_unpack(132)
        a(f's_call_b64 {RET2}, LN_ST')
        self.poll('v179', t3)
        a('s_barrier')
        self.stampn(10)
        self.ln_yload()
        a(f's_waitcnt vmcnt(0)\ns_call_b64 {RET}, LN_FIN')
        self.stampn(14)
    def ln2(self):
        a = self.a
        self.ln_offs(1)
        a(f's_add_u32 {t4}, {t0}, {XB}')
        for u in range(5): a(f'buffer_load_dwordx4 v[{132+4*u}:{135+4*u}], v{172+u}, {WS_}, {t4} offen sc1')
        self.ln_yload()
        a(f'''
        s_lshl_b32 {t3}, {t1}, 12
        s_add_u32 {t3}, {t3}, {FF}
        s_add_u32 {t4}, {t0}, {FB}
        s_waitcnt vmcnt(10)
        ''')
        self.ln_unpack(132)
        self.poll('v180', t3)
        self.stampn(18)
        for u in range(5): a(f'buffer_load_dwordx4 v[{152+4*u}:{155+4*u}], v{172+u}, {WS_}, {t4} offen sc1')
        for k in range(20):
            if k % 4 == 0: a(f's_waitcnt vmcnt({4 - k//4})')
            r = 188 + 2 * (k & 3)
            a(f'''
            v_lshlrev_b32 v{r}, 16, v{152+k}
            v_and_b32 v{r+1}, 0xffff0000, v{152+k}
            v_pk_add_f32 v[{72+2*k}:{73+2*k}], v[{72+2*k}:{73+2*k}], v[{r}:{r+1}]
            ''')
        a(f's_call_b64 {RET2}, LN_ST\ns_call_b64 {RET}, LN_FIN')
        self.stampn(22)

    def gelu_ops(self, acc):
        c1, c2 = -2.0*0.7978845608028654*1.4426950408889634, -2.0*0.7978845608028654*1.4426950408889634*0.044715
        O = []
        for p in range(4):
            g = acc + 2 * p; u = g + 8
            O += [f'v_pk_mul_f32 v[68:69], v[{g}:{g+1}], v[{g}:{g+1}]',
                  f'v_pk_mul_f32 v[{u}:{u+1}], v[{g}:{g+1}], v[{u}:{u+1}]',
                  f'v_pk_fma_f32 v[68:69], v[68:69], s[100:101], v[70:71] op_sel_hi:[1,0,0]',
                  f'v_pk_mul_f32 v[{g}:{g+1}], v[{g}:{g+1}], v[68:69]',
                  f'v_exp_f32 v{g}, v{g}', f'v_exp_f32 v{g+1}, v{g+1}',
                  f'v_pk_add_f32 v[{g}:{g+1}], v[{g}:{g+1}], 1.0 op_sel_hi:[1,0]',
                  f'v_rcp_f32 v{g}, v{g}', f'v_rcp_f32 v{g+1}, v{g+1}',
                  f'v_pk_mul_f32 v[{u}:{u+1}], v[{u}:{u+1}], v[{g}:{g+1}]',
                  f'v_cvt_pk_bf16_f32 v{64+p}, v{u}, v{u+1}']
        return O
    def a_dma(self, slot, soff, srd=WS_):
        O = [f's_add_u32 m0, {sMA}, {slot}']
        for cb in range(10):
            O.append(f'buffer_load_dwordx4 v6, {srd}, {soff} offen offset:{128*cb} sc1 lds' + ('\ns_add_u32 m0, m0, 896' if cb < 9 else ''))
        return O
    def h_dma(self, soff, srd=WS_):
        O = [f's_mov_b32 m0, {sMH}']
        for k in range(14):
            s_ = f'buffer_load_dwordx4 v1, {srd}, {soff} offen offset:{1024*(k&3)} sc1 lds'
            if k & 3 == 3: s_ += f'\ns_add_u32 m0, m0, 4096\ns_add_u32 {soff}, {soff}, 4096'
            O.append(s_)
        return O
    def q_unit(self, slot, acc, fill):
        a = self.a; ds = DS(a)
        rd = lambda ks: ds.op(f'ds_read_b128 v[{48+4*(ks&3)}:{51+4*(ks&3)}], v{2+(ks&3)} offset:{slot + 1024*(ks>>2)}', ks)
        for ks in range(3): rd(ks)
        fill = list(fill); nf = len(fill); k = 0
        for ks in range(40):
            ds.need(ks)
            c = f'v[{acc}:{acc+15}]'
            a(f'v_mfma_f32_32x32x16_bf16 {c}, v[{72+4*ks}:{75+4*ks}], v[{48+4*(ks&3)}:{51+4*(ks&3)}], {c if ks else 0}')
            if ks + 3 < 40: rd(ks + 3)
            while k < nf and (ks >= 1) and k < (ks * nf + 36) // 37: a(fill[k]); k += 1
        while k < nf: a(fill[k]); k += 1
    def q_simple(self):
        a = self.a
        a(f'''
        s_lshl_b32 {t0}, {N}, 14
        s_add_u32 {sPA}, {t0}, {FA}
        s_lshl_b32 {t0}, {N}, 3
        s_add_u32 {t0}, {t0}, {G}          ; n*8+g
        s_mul_i32 {t1}, {t0}, {64*1280}
        s_add_u32 {sAD}, {t1}, {AB}
        s_add_u32 {sQB}, {sAD}, {32*1280}
        s_mul_i32 {t1}, {t0}, {4*HST}
        s_lshl_b32 {t2}, {FS}, 2
        s_add_u32 {t2}, {t2}, {W}
        s_lshl_b32 {t3}, {t2}, 9
        s_add_u32 {t1}, {t1}, {t3}
        s_add_u32 {sQH}, {t1}, {HB}
        s_mul_i32 {t0}, {t0}, 112
        s_add_u32 {t0}, {t0}, {t2}
        s_lshl_b32 {t0}, {t0}, 7
        s_add_u32 {sFH}, {t0}, {FH}
        ''')
        self.poll('v10', sPA)
        self.stampn(10)
        for o in self.a_dma(L_A, sAD) + self.a_dma(L_B, sQB): a(o)
        a('s_waitcnt vmcnt(10)\ns_barrier')
        self.q_unit(L_A, 16, [])
        a('s_waitcnt vmcnt(0)\ns_barrier')
        self.q_unit(L_B, 32, self.gelu_ops(16) + [f'buffer_store_dwordx4 v[64:67], v8, {WS_}, {sQH} offen sc1', f's_add_u32 {sQH}, {sQH}, {2*HST}'])
        for o in self.gelu_ops(32): a(o)
        a(f'buffer_store_dwordx4 v[64:67], v8, {WS_}, {sQH} offen sc1\ns_barrier\ns_waitcnt vmcnt(0)')
        self.flag(sFH)
        self.stampn(18)
    def g_sub(self):
        a = self.a
        a('G_SUB:')
        a(f'''
        s_lshl_b32 {t0}, {sXH}, 3
        s_add_u32 {t0}, {t0}, {X}
        s_mul_i32 {t0}, {t0}, 112
        s_mul_i32 {t1}, {W}, 28
        s_add_u32 {t0}, {t0}, {t1}
        s_lshl_b32 {t0}, {t0}, 7
        s_add_u32 {sPH}, {t0}, {FH}
        s_lshl_b32 {t0}, {sXH}, 5
        s_add_u32 {t0}, {t0}, {T}          ; m*32+T
        s_mul_i32 {t1}, {t0}, {HST}
        s_mul_i32 {t2}, {W}, 14336
        s_add_u32 {t1}, {t1}, {t2}
        s_add_u32 {sHD}, {t1}, {HB}
        s_and_b32 {t0}, {t0}, 127          ; c*32+T
        s_lshl_b32 {t1}, {t0}, 3
        s_add_u32 {t1}, {t1}, {S}
        s_mul_i32 {t1}, {t1}, 2560
        s_mul_i32 {t2}, {W}, 640
        s_add_u32 {t1}, {t1}, {t2}
        s_add_u32 {sO1}, {t1}, {FB}
        s_add_u32 {sXA}, {t1}, {XB + SZ}
        s_mul_i32 {t1}, {t0}, 20480
        s_mul_i32 {t2}, {S}, 160
        s_add_u32 {sO2}, {t1}, {t2}
        s_lshl_b32 {t1}, {t0}, 2
        s_add_u32 {t1}, {t1}, {W}
        s_lshl_b32 {t1}, {t1}, 3
        s_add_u32 {t1}, {t1}, {S}
        s_lshl_b32 {t1}, {t1}, 7
        s_add_u32 {sPF}, {t1}, {FF}
        ''')
        self.poll('v9', sPH)
        for o in self.h_dma(sHD): a(o)
        a(f'''
        buffer_load_dwordx4 v[60:63], v1, {WS_}, {sXA} offen sc1
        s_waitcnt vmcnt(1)
        ''')
        ds = DS(a)
        rd = lambda ks: ds.op(f'ds_read_b128 v[{48+4*(ks%3)}:{51+4*(ks%3)}], v7 offset:{1024*ks}', ks)
        rd(0); rd(1)
        for ks in range(14):
            if ks == 12: a(f's_cmp_eq_u32 {W}, 3\ns_cbranch_scc1 G_RED')
            ds.need(ks)
            for j in range(5):
                c = f'v[{16+4*j}:{19+4*j}]'
                a(f'v_mfma_f32_16x16x32_bf16 {c}, {self.wd_reg(ks, j)}, v[{48+4*(ks%3)}:{51+4*(ks%3)}], {c if ks else 0}')
                if j == 0 and ks + 2 < 14: rd(ks + 2)
        a('G_RED:\ns_nop 7\ns_barrier')
        for j in range(5): a(f'ds_write_b128 v11, v[{16+4*j}:{19+4*j}] offset:{64*j}')
        a('s_waitcnt lgkmcnt(0)\ns_barrier')
        for p in range(4):
            a(f'ds_read_b128 v[{16+8*p}:{19+8*p}], v12 offset:{5376*p}\nds_read_b128 v[{20+8*p}:{23+8*p}], v12 offset:{5376*p+16}')
        a('s_waitcnt lgkmcnt(4)')
        for k in range(4): a(f'v_pk_add_f32 v[{16+2*k}:{17+2*k}], v[{16+2*k}:{17+2*k}], v[{24+2*k}:{25+2*k}]')
        a('s_waitcnt lgkmcnt(0)')
        for k in range(4): a(f'v_pk_add_f32 v[{32+2*k}:{33+2*k}], v[{32+2*k}:{33+2*k}], v[{40+2*k}:{41+2*k}]')
        for k in range(4): a(f'v_pk_add_f32 v[{16+2*k}:{17+2*k}], v[{16+2*k}:{17+2*k}], v[{32+2*k}:{33+2*k}]')
        a(f'''
        s_mov_b32 exec_hi, 0xff
        s_cmp_ge_u32 {sXH}, 4
        s_cbranch_scc1 G_OUT
        ''')
        for k in range(4): a(f'v_cvt_pk_bf16_f32 v{64+k}, v{16+2*k}, v{17+2*k}')
        a(f'''
        buffer_store_dwordx4 v[64:67], v1, {WS_}, {sO1} offen sc1
        s_waitcnt vmcnt(0)
        ''')
        self.flag(sPF)
        a(f's_setpc_b64 {RET}\nG_OUT:\ns_waitcnt vmcnt(0)')
        for k in range(4):
            a(f'''
            v_lshlrev_b32 v32, 16, v{60+k}
            v_and_b32 v33, 0xffff0000, v{60+k}
            v_pk_add_f32 v[{16+2*k}:{17+2*k}], v[{16+2*k}:{17+2*k}], v[32:33]
            v_cvt_pk_bf16_f32 v{64+k}, v{16+2*k}, v{17+2*k}
            ''')
        a(f'''
        buffer_store_dwordx4 v[64:67], v13, {OUT_}, {sO2} offen
        s_mov_b32 exec_hi, -1
        s_setpc_b64 {RET}
        ''')

    def wd_all(self):
        for l in ('WD_I0', 'WD_C0', 'WD_C1', 'WD_C2', 'WD_C3'): self.a(f's_call_b64 {RET2}, {l}')
        self.a('s_barrier')
    def main(self):
        a = self.a
        self.prologue()
        self.p0()
        a(f'''
        s_bitcmp1_b32 {ROLE}, 0
        s_cbranch_scc1 R_G1
        s_waitcnt vmcnt(0)
        ''')
        self.flag(t4)
        self.stamp(2)
        a('s_barrier')
        a(f'''
        s_bitcmp1_b32 {ROLE}, 2
        s_cbranch_scc1 R_LN
        ''')
        self.wd_all()
        a(f'''
        s_mov_b32 {sXH}, 0
        G2_LOOP:
        s_call_b64 {RET}, G_SUB
        s_add_u32 {sXH}, {sXH}, 1
        s_cmp_lt_u32 {sXH}, 8
        s_cbranch_scc1 G2_LOOP
        s_branch DONE
        ''')
        a('R_LN:')
        self.ln_setup()
        self.wd_all()
        self.stamp(3)
        a(f's_mov_b32 {N}, 0\nLN1_LOOP:')
        self.ln1()
        a(f'''
        s_add_u32 {N}, {N}, 1
        s_cmp_lt_u32 {N}, 4
        s_cbranch_scc1 LN1_LOOP
        s_mov_b32 {sXH}, 0
        LN2_LOOP:
        s_call_b64 {RET}, G_SUB
        s_sub_u32 {N}, {sXH}, 1
        s_add_u32 {sXH}, {sXH}, 1
        s_cmp_ge_u32 {N}, 4
        s_cbranch_scc1 LN2_SKIP
        ''')
        self.ln2()
        a(f'''
        LN2_SKIP:
        s_cmp_lt_u32 {sXH}, 8
        s_cbranch_scc1 LN2_LOOP
        s_branch DONE
        ''')
        a('R_G1:')
        self.w1_setup()
        self.w1_issue(16)
        a(f'''
        s_bitcmp1_b32 {ROLE}, 1
        s_cbranch_scc1 R_CONV
        s_waitcnt vmcnt(16)
        ''')
        self.flag(t4)
        self.stamp(2)
        self.w1_consume(0, 16); self.w1_issue(16); self.w1_consume(16, 16); self.w1_issue(8); self.w1_consume(32, 8)
        a('s_branch G1_MAIN\nR_CONV:\ns_waitcnt vmcnt(16)')
        self.flag(t4)
        self.stamp(2)
        self.hbuild()
        self.w1_consume(0, 16)
        self.stamp(3)
        self.conv()
        a('G1_MAIN:')
        self.wd_all()
        a(f's_mov_b32 {sC2}, {hex(f2u(-2.0*0.7978845608028654*1.4426950408889634*0.044715))}')
        a(f's_mov_b32 s101, {sC2}')
        a(f'v_mov_b32 v70, {hex(f2u(-2.0*0.7978845608028654*1.4426950408889634))}')
        a(f's_mov_b32 {N}, 0\nG1_LOOP:')
        self.q_simple()
        a(f'''
        s_sub_u32 {sXH}, {N}, 1
        s_cbranch_scc1 G1_NOG
        s_call_b64 {RET}, G_SUB
        G1_NOG:
        ''')
        self.stampn(26)
        a(f'''
        s_add_u32 {N}, {N}, 1
        s_cmp_lt_u32 {N}, 8
        s_cbranch_scc1 G1_LOOP
        s_mov_b32 {sXH}, 7
        s_call_b64 {RET}, G_SUB
        DONE:
        ''')
        self.stamp(62)
        if self.timers:
            a(f'''
            s_lshl_b32 {t0}, s2, 2
            s_add_u32 {t0}, {t0}, {W}
            s_lshl_b32 {t0}, {t0}, 8
            s_add_u32 {t0}, {t0}, {TIM}
            v_lshlrev_b32 v16, 2, v0
            buffer_store_dword v71, v16, {WS_}, {t0} offen
            ''')
        a(f'''
        s_or_b32 {t0}, s2, {W}
        s_cbranch_scc1 FIN
        ''')
        self.flag('0')
        a('''
        FIN:
        s_waitcnt vmcnt(0)
        EXIT:
        s_endpgm
        ''')
        self.g_sub(); self.ln_subs(); self.wd_subs()

def build(path, **kw):
    g = Gen(**kw); g.main()
    ref = open('interleave_layers__ssm_conv_h3__geglu_ffn__prompt.s.ref').read().split('\n')
    hdr = [l for l in ref if l.startswith(';') and '@launch' not in l]
    hdr = hdr[:14] + ['; @launch grid=(256,1,1) block=(256,1,1) lds=163840']
    txt = '\n'.join(hdr) + f'\n.amdgcn_target "amdgcn-amd-amdhsa--gfx950"\n.text\n.globl {KN}\n.p2align 8\n.type {KN},@function\n{KN}:\n'
    txt += g.a.text() + kern_desc(KN)
    open(path, 'w').write(txt)
    print(path, 'lines', txt.count('\n'), 'nops', g.a.nops)

if __name__ == '__main__':
    build('k_t.s', timers=True)
    build('k.s')
```

```python
import sys, struct, re
from asm2 import *

def f2u(f): return struct.unpack('<I', struct.pack('<f', f))[0]

FP0 = 0x1000; FY = FP0 + 0x20000; FA = FY + 0x50000; FH = FA + 0x20000; FF = FH + 0xE0000
TIM = FF + 0x80000; DUMMY = TIM + 0x40000
UT = 0x300000; YB = 0x600000; AB = 0x900000; XB = 0xE00000; FB = 0x1300000; HB = 0x1600000
WS_SIZE = 0x2400000
SZ = 0x280000
HST = 57344
L_A = 0; L_B = 40960; L_H = 81920; L_R = 139264
L_CW = 21248; L_U = 16640; L_W1 = 84992; L_X = 153600; L_WD = 81920
K_, V_, SK_, H_, D_, Q_, WG_, WU_, WD_, OUT_, WS_ = [f's[{4*i+4}:{4*i+7}]' for i in range(11)]
TAG, W, X, II, T, S, G, FS = [f's{i}' for i in range(48, 56)]
WSB = 's[56:59]'; WSD = 's[60:63]'; W1_ = 's[64:67]'
N = 's68'; CNT = 's69'
sQB, sQH, sPF, sPH, sXH, sHD, sFH, sPA, sXA, sAD, sO1, sO2 = [f's{i}' for i in range(70, 82)]
sMA = 's82'
sMH = 's83'
sWDo = 's84'
sW1o = 's85'
t0, t1, t2, t3, t4, t5 = [f's{i}' for i in range(86, 92)]
RET = 's[92:93]'; RET2 = 's[94:95]'
TM = 's[96:97]'
ROLE = 's98'
sC2 = 's100'
LIMIT = 0x10000

class DS:
    def __init__(self, a): self.a = a; self.q = []; self.done = set()
    def op(self, txt, tag=None):
        self.a(txt); self.q.append(tag)
    def need(self, tag):
        if tag in self.done: return
        i = self.q.index(tag)
        n = len(self.q) - 1 - i
        k = min(n, 15)
        self.a(f's_waitcnt lgkmcnt({k})')
        cut = len(self.q) - k
        for t_ in self.q[:cut]: self.done.add(t_)
        self.q = self.q[cut:]

class Gen:
    def __init__(self, timers=False, stop_after=None, dbg=False):
        self.a = Asm(); self.timers = timers; self.stop = stop_after; self.dbg = dbg
        self.nst = 0
    def stamp(self, k):
        if not self.timers: return
        self.a(f'''
        s_memtime {TM}
        s_waitcnt lgkmcnt(0)
        v_writelane_b32 v71, s96, {k}
        ''')
    def stampn(self, base, mul=1):
        if not self.timers: return
        self.a(f'''
        s_memtime {TM}
        s_mul_i32 s99, {N}, {mul}
        s_add_u32 m0, s99, {base}
        s_waitcnt lgkmcnt(0)
        v_writelane_b32 v71, s96, m0
        ''')
    def poll(self, vaddr, soff, srd=WS_, exp=TAG):
        a = self.a; L = a.label('POLL'); D = a.label('PDONE')
        a(f'''
        s_mov_b32 {CNT}, {LIMIT}
        {L}:
        buffer_load_dword v14, {vaddr}, {srd}, {soff} offen sc1
        s_waitcnt vmcnt(0)
        v_cmp_ne_u32 vcc, {exp}, v14
        s_cbranch_vccz {D}
        s_sub_u32 {CNT}, {CNT}, 1
        s_cbranch_scc0 {L}
        {D}:
        ''')
    def flag(self, soff):
        self.a(f'''
        s_mov_b64 exec, 1
        buffer_store_dword v15, off, {WS_}, {soff} sc1
        s_mov_b64 exec, -1
        ''')

    def prologue(self):
        a = self.a
        a(f'''
        s_cmp_ge_u32 s2, 256
        s_cbranch_scc1 EXIT
        s_load_dwordx2 s[4:5], s[0:1], 8
        s_load_dwordx2 s[8:9], s[0:1], 16
        s_load_dwordx2 s[12:13], s[0:1], 24
        s_load_dwordx2 s[44:45], s[0:1], 96
        s_load_dwordx2 s[16:17], s[0:1], 32
        s_load_dwordx2 s[20:21], s[0:1], 40
        s_load_dwordx2 s[24:25], s[0:1], 0
        s_load_dwordx2 s[28:29], s[0:1], 56
        s_load_dwordx2 s[32:33], s[0:1], 64
        s_load_dwordx2 s[36:37], s[0:1], 72
        s_load_dwordx2 s[40:41], s[0:1], 80
        v_lshrrev_b32 v1, 6, v0
        v_and_b32 v0, 63, v0
        v_readfirstlane_b32 {W}, v1
        s_and_b32 {X}, s2, 7
        s_lshr_b32 {II}, s2, 3
        ''')
        if self.dbg: a(f's_memrealtime {TM}')
        if self.timers:
            a(f'''
            v_mov_b32 v71, 0
            s_memrealtime s[98:99]
            s_memtime {TM}
            s_waitcnt lgkmcnt(0)
            v_writelane_b32 v71, s96, 0
            v_writelane_b32 v71, s98, 63
            ''')
        sizes = [SZ, SZ, 5120, SZ, 1280, SZ, 640*1728*2, 640*1728*2, 640*1728*2, SZ, WS_SIZE]
        for i, z in enumerate(sizes):
            a(f's_mov_b32 s{4*i+6}, {z}\ns_mov_b32 s{4*i+7}, 0x00020000')
        a(f'''
        v_mul_u32_u24 v16, 205, v0
        v_lshrrev_b32 v16, 11, v16
        v_mul_u32_u24 v17, 10, v16
        v_sub_u32 v17, v0, v17
        s_lshr_b32 {t0}, {II}, 3
        s_lshl_b32 {t1}, {X}, 2
        s_add_u32 {T}, {t1}, {t0}
        s_and_b32 {S}, {II}, 7
        s_lshl_b32 {t0}, {T}, 6
        s_lshl_b32 {t1}, {W}, 4
        s_add_u32 {t0}, {t0}, {t1}
        v_lshlrev_b32 v18, 2, v16
        v_add_u32 v18, {t0}, v18           ; t
        s_mul_i32 {t2}, {S}, 160
        v_mul_u32_u24 v19, 1280, v18
        v_lshl_add_u32 v19, v17, 4, v19
        v_add_u32 v19, {t2}, v19
        v_subrev_u32 v20, 3840, v19
        v_cmp_eq_u32 vcc, 0, v18
        v_mov_b32 v21, 0x40000000
        s_mul_i32 {t2}, {S}, 640
        v_cndmask_b32 v20, v20, v21, vcc
        v_lshlrev_b32 v21, 6, v17
        v_add_u32 v21, {t2}, v21
        s_waitcnt lgkmcnt(0)
        s_load_dword {TAG}, s[44:45], 0
        s_mov_b32 exec_lo, -1
        s_mov_b32 exec_hi, 0xff
        ''')
        for r in range(3): a(f'buffer_load_dwordx4 v[{72+4*r}:{75+4*r}], v20, {K_}, 0 offen offset:{1280*r}')
        for r in range(4): a(f'buffer_load_dwordx4 v[{84+4*r}:{87+4*r}], v19, {K_}, 0 offen offset:{1280*r}')
        for r in range(4): a(f'buffer_load_dwordx4 v[{100+4*r}:{103+4*r}], v19, {V_}, 0 offen offset:{1280*r}')
        for r in range(4): a(f'buffer_load_dwordx4 v[{116+4*r}:{119+4*r}], v21, {SK_}, 0 offen offset:{16*r}')
        a('s_mov_b64 exec, -1')
        a(f'''
        s_and_b32 {t0}, {X}, 1
        s_lshl_b32 {t0}, {t0}, 2
        s_and_b32 {t1}, {II}, 3
        s_add_u32 {G}, {t0}, {t1}
        s_lshr_b32 {t0}, {X}, 1
        s_mul_i32 {t0}, {t0}, 7
        s_lshr_b32 {t1}, {II}, 2
        s_add_u32 {FS}, {t0}, {t1}
        s_mov_b32 {ROLE}, 0
        s_cmp_lt_u32 {FS}, 27
        s_cselect_b32 {ROLE}, 1, 0
        s_cmp_lt_u32 {II}, 20
        s_cselect_b32 {t0}, 2, 0
        s_or_b32 {ROLE}, {ROLE}, {t0}
        s_cmp_ge_u32 {II}, 28
        s_cselect_b32 {ROLE}, 4, {ROLE}
        s_mov_b32 s56, s44
        s_mov_b32 s57, s45
        s_mov_b32 s58, 0
        s_mov_b32 s59, 0x00020000
        s_mov_b32 s60, s44
        s_mov_b32 s61, s45
        s_mov_b32 s62, 0
        s_mov_b32 s63, 0x00020000
        s_bitcmp1_b32 {W}, 0
        s_cselect_b32 s64, s32, s28
        s_cselect_b32 s65, s33, s29
        s_mov_b32 s66, {640*1728*2}
        s_mov_b32 s67, 0x00020000
        s_mul_i32 {sMA}, {W}, 10240
        s_mul_i32 {sMH}, {W}, 14336
        s_add_u32 {sMH}, {sMH}, {L_H}
        ''')
        a(f'''
        v_lshlrev_b32 v1, 4, v0
        v_and_b32 v22, 31, v0              ; t
        v_lshrrev_b32 v23, 5, v0           ; h
        v_lshrrev_b32 v24, 3, v22
        v_mul_u32_u24 v24, 10240, v24
        v_and_b32 v25, 7, v22
        v_lshl_add_u32 v24, v25, 7, v24
        v_bfe_u32 v25, v22, 1, 3           ; swz
        v_xor_b32 v25, v25, v23
        ''')
        for q in range(4):
            a(f'v_xor_b32 v26, {2*q}, v25\nv_lshl_add_u32 v{2+q}, v26, 4, v24')
        a(f'''
        v_lshrrev_b32 v24, 3, v0
        s_lshl_b32 {t0}, {W}, 3
        v_add_u32 v24, {t0}, v24
        v_bfe_u32 v25, v24, 1, 3
        v_and_b32 v26, 7, v0
        v_xor_b32 v25, v25, v26
        v_mul_u32_u24 v24, 1280, v24
        v_lshl_add_u32 v6, v25, 4, v24
        v_add_u32 v7, {sMH}, v1
        v_lshrrev_b32 v24, 4, v22
        v_mul_u32_u24 v24, {HST}, v24
        v_lshl_add_u32 v24, v23, 8, v24
        v_and_b32 v25, 15, v0
        v_lshl_add_u32 v8, v25, 4, v24
        s_cmp_eq_u32 {W}, 3
        s_cselect_b32 {t0}, 23, 27
        v_min_u32 v9, {t0}, v0
        v_lshlrev_b32 v9, 7, v9
        v_and_b32 v24, 1, v0
        v_bfe_u32 v26, v0, 1, 1
        v_lshl_add_u32 v24, v26, 3, v24
        s_lshl_b32 {t0}, {G}, 2
        s_lshr_b32 {t1}, {W}, 1
        s_add_u32 {t0}, {t0}, {t1}
        s_lshl_b32 {t0}, {t0}, 2
        s_and_b32 {t1}, {W}, 1
        s_lshl_b32 {t1}, {t1}, 1
        s_add_u32 {t0}, {t0}, {t1}
        v_add_u32 v24, {t0}, v24
        v_lshlrev_b32 v10, 7, v24
        v_mul_u32_u24 v24, 336, v25
        v_lshrrev_b32 v26, 4, v0
        v_lshl_add_u32 v24, v26, 4, v24
        s_mul_i32 {t0}, {W}, 5376
        s_add_u32 {t0}, {t0}, {L_R}
        v_add_u32 v11, {t0}, v24
        s_lshl_b32 {t0}, {W}, 2
        v_add_u32 v24, {t0}, v16
        v_min_u32 v24, 15, v24
        v_mul_u32_u24 v26, 336, v24
        v_lshl_add_u32 v26, v17, 5, v26
        v_add_u32 v12, {L_R}, v26
        v_mul_u32_u24 v26, 1280, v24
        v_lshl_add_u32 v13, v17, 4, v26
        s_waitcnt lgkmcnt(0)
        s_mul_i32 {TAG}, {TAG}, 0x9E3779B1
        s_add_u32 {TAG}, {TAG}, 0x7F4A7C15
        v_mov_b32 v15, {TAG}
        ''')

    def p0(self):
        a = self.a
        a(f'''
        s_mul_i32 {t0}, {X}, 20
        s_add_u32 {t0}, {t0}, {II}
        s_lshl_b32 {t0}, {t0}, 2
        s_add_u32 {t0}, {t0}, {W}
        s_lshl_b32 {t1}, {t0}, 12
        v_add_u32 v38, {t1}, v1
        v_subrev_u32 v39, 8, v38
        s_lshl_b32 {t1}, {t0}, 1
        v_mov_b32 v36, {t1}
        v_mov_b32 v40, 0
        v_mov_b32 v41, 0
        s_waitcnt vmcnt(0)
        ''')
        self.stamp(1)
        a(f'''
        s_bitcmp1_b32 {ROLE}, 1
        s_cbranch_scc0 P0_NOH
        s_mov_b64 exec, -2
        buffer_load_dwordx2 v[40:41], v39, {H_}, 0 offen
        s_mov_b64 exec, -1
        ''')
        for y in range(4):
            if y: a(f'buffer_load_dwordx2 v[{40+6*y}:{41+6*y}], v39, {H_}, 0 offen offset:{1024*y}')
            a(f'buffer_load_dwordx4 v[{42+6*y}:{45+6*y}], v38, {H_}, 0 offen offset:{1024*y}')
        a(f'''
        buffer_load_ushort v37, v36, {D_}, 0 offen
        P0_NOH:
        s_mov_b32 {t2}, 0x05040100
        s_mov_b32 {t3}, 0x07060302
        s_lshl_b32 {t0}, {W}, 1
        v_lshrrev_b32 v22, 1, v16
        v_add_u32 v22, {t0}, v22
        v_and_b32 v23, 7, v17
        v_xor_b32 v22, v22, v23
        v_lshlrev_b32 v22, 4, v22
        v_and_b32 v23, 1, v16
        v_lshl_add_u32 v22, v23, 3, v22
        v_lshl_add_u32 v22, v17, 10, v22
        v_add_u32 v22, {L_X}, v22
        s_mov_b32 exec_lo, -1
        s_mov_b32 exec_hi, 0xff
        ''')
        for j in range(8):
            d = j >> 1; sel = t3 if j & 1 else t2
            P = 132; U = 140 + 8 * (j & 1); VV = 156
            for s_ in range(1, 7):
                a(f'v_perm_b32 v{P+s_}, v{72+4*(s_-1)+d}, v{72+4*s_+d}, {sel}')
            for r in range(4):
                a(f'v_dot2_f32_bf16 v{U+r}, v{P+r+1}, v{117+2*j}, 0')
            for r in range(4):
                a(f'v_dot2_f32_bf16 v{U+r}, v{P+r+3}, v{116+2*j}, v{U+r}')
            for r in range(4):
                if j & 1: a(f'v_and_b32 v{VV+r}, 0xffff0000, v{100+4*r+d}')
                else: a(f'v_lshlrev_b32 v{VV+r}, 16, v{100+4*r+d}')
            a(f'''
            v_pk_mul_f32 v[{U}:{U+1}], v[{U}:{U+1}], v[{VV}:{VV+1}]
            v_pk_mul_f32 v[{U+2}:{U+3}], v[{U+2}:{U+3}], v[{VV+2}:{VV+3}]
            v_cvt_pk_bf16_f32 v{U+4}, v{U}, v{U+1}
            v_cvt_pk_bf16_f32 v{U+5}, v{U+2}, v{U+3}
            ds_write_b64 v22, v[{U+4}:{U+5}] offset:{128*j}
            ''')
        a(f'''
        s_mov_b64 exec, -1
        s_mul_i32 {t0}, {W}, 20
        v_lshrrev_b32 v22, 3, v0
        v_add_u32 v22, {t0}, v22
        v_and_b32 v23, 7, v0
        ''')
        for y in range(3):
            a(f'''
            v_add_u32 v24, {8*y}, v22
            v_bfe_u32 v25, v24, 3, 3
            v_xor_b32 v25, v25, v23
            v_lshlrev_b32 v25, 4, v25
            v_lshl_add_u32 v25, v24, 7, v25
            v_add_u32 v{26+y}, {L_X}, v25
            ''')
        a(f'''
        s_mul_i32 {t0}, {S}, 80
        v_add_u32 v22, {t0}, v22
        v_lshlrev_b32 v22, 12, v22
        v_lshl_add_u32 v22, v23, 4, v22
        s_lshl_b32 {t0}, {T}, 7
        s_add_u32 {t0}, {t0}, {UT}
        s_add_u32 {t1}, {t0}, 0x8000
        s_add_u32 {t2}, {t0}, 0x10000
        s_waitcnt lgkmcnt(0)
        ''')
        self.stamp(55)
        a(f'''
        s_barrier
        ds_read_b128 v[72:75], v26
        ds_read_b128 v[76:79], v27
        s_mov_b32 exec_hi, 0
        ds_read_b128 v[80:83], v28
        s_mov_b32 exec_hi, -1
        s_waitcnt lgkmcnt(2)
        buffer_store_dwordx4 v[72:75], v22, {WS_}, {t0} offen sc1
        s_waitcnt lgkmcnt(1)
        buffer_store_dwordx4 v[76:79], v22, {WS_}, {t1} offen sc1
        s_waitcnt lgkmcnt(0)
        s_mov_b32 exec_hi, 0
        buffer_store_dwordx4 v[80:83], v22, {WS_}, {t2} offen sc1
        s_mov_b32 exec_hi, -1
        s_lshl_b32 {t4}, {S}, 2
        s_add_u32 {t4}, {t4}, {W}
        s_lshl_b32 {t4}, {t4}, 5
        s_add_u32 {t4}, {t4}, {T}
        s_lshl_b32 {t4}, {t4}, 7
        s_add_u32 {t4}, {t4}, {FP0}
        ''')

    def w1_setup(self):
        self.a(f'''
        v_lshrrev_b32 v66, 3, v0
        v_bfe_u32 v67, v0, 4, 1
        v_lshlrev_b32 v67, 1, v67
        s_and_b32 {t0}, {W}, 1
        s_lshl_b32 {t0}, {t0}, 2
        v_or_b32 v67, {t0}, v67
        v_and_b32 v68, 7, v0
        v_xor_b32 v67, v67, v68
        v_mul_u32_u24 v66, 3456, v66
        v_lshl_add_u32 v64, v67, 4, v66
        s_lshr_b32 {t0}, {W}, 1
        s_mul_i32 {t0}, {t0}, {8*3456}
        s_lshl_b32 {sW1o}, {FS}, 7
        s_add_u32 {sW1o}, {sW1o}, {t0}
        v_lshrrev_b32 v66, 4, v0
        v_and_b32 v67, 1, v66              ; mat
        v_lshrrev_b32 v66, 1, v66          ; h
        v_lshlrev_b32 v66, 11, v66
        v_lshl_add_u32 v66, v67, 10, v66
        v_bfe_u32 v68, v0, 2, 2            ; r
        v_lshl_add_u32 v66, v68, 7, v66
        v_lshrrev_b32 v68, 1, v68
        v_lshl_add_u32 v68, v67, 1, v68    ; sigma
        v_xor_b32 v68, {W}, v68
        v_lshl_add_u32 v66, v68, 5, v66
        v_and_b32 v68, 3, v0
        v_lshl_add_u32 v66, v68, 3, v66
        v_add_u32 v65, {L_W1}, v66
        ''')
    def w1_issue(self, nks):
        a = self.a
        a(f's_lshl_b32 {t0}, {W}, 10\ns_add_u32 m0, {t0}, {L_W1}')
        for i in range(nks):
            a(f'''
            buffer_load_dwordx4 v64, {W1_}, {sW1o} offen lds
            s_add_u32 m0, m0, 4096
            s_add_u32 {sW1o}, {sW1o}, {16*3456}
            ''')
    def w1_consume(self, ks0, nks):
        a = self.a
        a('s_waitcnt vmcnt(0)\ns_barrier')
        for i in range(nks):
            r = 72 + 4 * (ks0 + i)
            a(f'ds_read_b64_tr_b16 v[{r}:{r+1}], v65 offset:{4096*i}')
            a(f'ds_read_b64_tr_b16 v[{r+2}:{r+3}], v65 offset:{4096*i+512}')
        a('s_waitcnt lgkmcnt(0)\ns_barrier')
    @staticmethod
    def wd_reg(ks, j):
        f = ks * 5 + j
        return f'a[{4*f}:{4*f+3}]' if f < 64 else f'v[{232+4*(f-64)}:{235+4*(f-64)}]'
    @staticmethod
    def wd_half(ks, j, e):
        f = ks * 5 + j
        return f'a[{4*f+2*e}:{4*f+2*e+1}]' if f < 64 else f'v[{232+4*(f-64)+2*e}:{233+4*(f-64)+2*e}]'
    def wd_addr(self):
        a = self.a
        for y in range(5):
            a(f'''
            v_add_u32 v70, {64*y}, v0
            v_mul_u32_u24 v14, 6554, v70
            v_lshrrev_b32 v14, 16, v14
            v_mul_u32_u24 v69, 10, v14
            v_sub_u32 v70, v70, v69
            v_mul_u32_u24 v14, 1280, v14
            v_lshl_add_u32 v{64+y}, v70, 4, v14
            ''')
        a(f'''
        v_lshrrev_b32 v70, 5, v0
        v_bfe_u32 v14, v0, 4, 1
        v_lshlrev_b32 v70, 2, v70
        v_add_u32 v70, v70, v14
        v_bfe_u32 v14, v0, 2, 2
        v_lshl_add_u32 v70, v70, 2, v14
        v_mul_u32_u24 v70, 160, v70
        v_and_b32 v14, 3, v0
        v_lshl_add_u32 v70, v14, 3, v70
        s_mul_i32 {t5}, {W}, 20480
        s_add_u32 {t5}, {t5}, {L_WD}
        v_add_u32 v69, {t5}, v70
        ''')
    def wd_issue(self, nks):
        a = self.a
        a(f's_mov_b32 m0, {t5}')
        for i in range(nks):
            for y in range(5):
                a(f'buffer_load_dwordx4 v{64+y}, {WD_}, {sWDo} offen lds\ns_add_u32 m0, m0, 1024')
            a(f's_add_u32 {sWDo}, {sWDo}, {32*1280}')
    def wd_subs(self):
        a = self.a
        bt = [4, 4, 4, 2]
        a('WD_I0:')
        a(f'''
        s_mul_i32 {sWDo}, {W}, {448*1280}
        s_mul_i32 {t0}, {S}, 160
        s_add_u32 {sWDo}, {sWDo}, {t0}
        ''')
        self.wd_addr(); self.wd_issue(4)
        a(f's_setpc_b64 {RET2}')
        for k in range(4):
            a(f'WD_C{k}:')
            self.wd_addr()
            a('s_waitcnt vmcnt(0)')
            for i in range(bt[k]):
                for j in range(5):
                    for e in range(2):
                        a(f'ds_read_b64_tr_b16 {self.wd_half(4*k+i, j, e)}, v69 offset:{5120*i + 32*j + 1280*e}')
            a('s_waitcnt lgkmcnt(0)')
            if k < 3: self.wd_issue(bt[k+1])
            a(f's_setpc_b64 {RET2}')

    def hbuild(self):
        a = self.a
        a(f'''
        s_mul_i32 {t0}, {W}, {L_CW}
        s_add_u32 {t1}, {t0}, 4080
        v_sub_u32 v38, {t1}, v1
        v_subrev_u32 v38, 3072, v38
        s_mov_b32 {t2}, 0xffff
        v_mov_b32 v16, 0
        v_mov_b32 v17, 0
        v_mov_b32 v18, 0
        v_mov_b32 v19, 0
        v_lshrrev_b32 v39, 1, v1
        s_add_u32 {t1}, {t0}, {L_U}
        v_add_u32 v39, {t1}, v39
        ds_write_b64 v39, v[16:17]
        v_bfe_u32 v39, v0, 1, 2
        v_mul_u32_u24 v39, 4160, v39
        v_and_b32 v36, 1, v0
        v_lshl_add_u32 v39, v36, 4, v39
        s_add_u32 {t1}, {t0}, 4096
        v_add_u32 v39, {t1}, v39
        ds_write_b128 v39, v[16:19]
        ''')
        for y in range(4):
            D = lambda k: f'v{42+6*y+k}'
            for s_ in range(4):
                r = 16 + 4 * s_
                for o in range(4):
                    if s_ == 0: a(f'v_alignbit_b32 v{r+o}, {D(3-o)}, {D(3-o)}, 16')
                    if s_ == 1: a(f'v_bfi_b32 v{r+o}, {t2}, {D(3-o)}, {D(2-o)}')
                    if s_ == 2: a(f'v_alignbit_b32 v{r+o}, {D(2-o)}, {D(2-o)}, 16')
                    if s_ == 3: a(f'v_bfi_b32 v{r+o}, {t2}, {D(2-o)}, {D(1-o)}')
                a(f'ds_write_b128 v38, v[{r}:{r+3}] offset:{4160*s_ + 3072 - 1024*y}')
        a(f'''
        v_and_b32 v16, 15, v0              ; m / n
        v_lshrrev_b32 v17, 4, v0           ; q
        v_lshrrev_b32 v18, 3, v16
        v_add_u32 v18, 2, v18
        v_cmp_eq_u32 vcc, v17, v18
        v_and_b32 v19, 1, v0
        v_lshlrev_b32 v19, 4, v19
        v_lshlrev_b32 v37, v19, v37
        v_cndmask_b32 v37, 0, v37, vcc
        v_bfe_u32 v19, v0, 1, 2
        ''')
        for d in range(4):
            a(f'v_cmp_eq_u32 vcc, {d}, v19\ns_nop 1\nv_cndmask_b32 v{32+d}, 0, v37, vcc')
        a(f'''
        v_sub_u32 v18, 3, v16
        v_and_b32 v18, 3, v18
        v_mul_u32_u24 v18, 4160, v18
        v_lshl_add_u32 v18, v17, 4, v18
        v_lshrrev_b32 v19, 2, v16
        v_lshlrev_b32 v19, 3, v19
        v_sub_u32 v18, v18, v19
        s_add_u32 {t1}, {t0}, 24
        v_add_u32 v36, {t1}, v18
        v_lshlrev_b32 v18, 5, v16
        v_lshl_add_u32 v18, v17, 4, v18
        s_add_u32 {t1}, {t0}, {L_U + 32}
        v_add_u32 v39, {t1}, v18
        s_lshl_b32 {t1}, {W}, 2
        v_add_u32 v18, {t1}, v17
        v_xor_b32 v18, v18, v16
        v_lshlrev_b32 v18, 3, v18
        v_lshl_add_u32 v18, v16, 7, v18
        v_add_u32 v66, {L_X}, v18
        v_bfe_u32 v18, v0, 1, 1
        v_lshl_add_u32 v18, v17, 1, v18
        s_lshl_b32 {t1}, {W}, 3
        v_add_u32 v18, {t1}, v18
        v_bfe_u32 v19, v0, 2, 2
        v_and_b32 v20, 1, v0
        v_lshl_add_u32 v19, v19, 2, v20
        v_and_b32 v20, 15, v18
        v_xor_b32 v19, v19, v20
        v_lshlrev_b32 v19, 3, v19
        v_lshl_add_u32 v19, v18, 7, v19
        v_add_u32 v67, {L_X}, v19
        v_xor_b32 v69, 16, v67
        v_lshrrev_b32 v18, 3, v0
        v_mul_u32_u24 v18, 20480, v18
        v_and_b32 v19, 7, v0
        v_lshl_add_u32 v68, v19, 4, v18
        v_and_b32 v70, 31, v0
        v_lshlrev_b32 v70, 7, v70
        s_waitcnt lgkmcnt(0)
        ''')
        for b in range(32):
            a(f'ds_read_b64 a[{4*b}:{4*b+1}], v36 offset:{64*(63-b)}')
            a(f'ds_read_b64 a[{4*b+2}:{4*b+3}], v36 offset:{64*(63-b)+8}')

    def conv(self):
        a = self.a
        a(f'''
        s_mul_i32 {t0}, {II}, 52
        s_lshr_b32 {t0}, {t0}, 8           ; i/5
        s_lshl_b32 {t1}, {X}, 2
        s_add_u32 {t0}, {t0}, {t1}
        s_lshl_b32 {t0}, {t0}, 12
        s_add_u32 {t0}, {t0}, {FP0}
        s_mul_i32 {t1}, {X}, 20
        s_add_u32 {t1}, {t1}, {II}         ; cw
        s_lshl_b32 {t2}, {t1}, 2
        s_add_u32 {t2}, {t2}, {W}
        s_lshl_b32 {t2}, {t2}, 12
        s_add_u32 {t2}, {t2}, {UT}
        s_mul_i32 {t3}, {W}, {L_CW}
        s_add_u32 m0, {t3}, {L_U + 512}
        s_mul_i32 {t3}, {W}, 1280
        s_add_u32 {t3}, {t3}, {t1}
        s_lshl_b32 {t3}, {t3}, 7
        s_add_u32 {sO1}, {t3}, {YB}
        s_mul_i32 {t3}, {W}, 160
        s_add_u32 {t3}, {t3}, {t1}
        s_lshl_b32 {t3}, {t3}, 7
        s_add_u32 {sO2}, {t3}, {FY}
        ''')
        self.poll('v70', t0)
        self.stamp(4)
        for y in range(4):
            a(f'buffer_load_dwordx4 v1, {WS_}, {t2} offen offset:{1024*y} sc1 lds')
        a('s_waitcnt vmcnt(0)')
        self.stamp(5)
        ds = DS(a)
        Areg = {b: f'a[{4*b}:{4*b+3}]' for b in range(32)}
        Breg = {e: f'a[{128+4*(e+7)}:{131+4*(e+7)}]' for e in range(-7, 25)}
        def rng(r):
            m = re.fullmatch(r'([av])\[(\d+):(\d+)\]', r); return m.group(1), int(m.group(2))
        def ldA(b):
            k, r = rng(Areg[b])
            return [(f'ds_read_b64 {k}[{r}:{r+1}], v36 offset:{64*(63-b)}', None),
                    (f'ds_read_b64 {k}[{r+2}:{r+3}], v36 offset:{64*(63-b)+8}', ('A', b))]
        def ldB(e): return [(f'ds_read_b128 {Breg[e]}, v39 offset:{64*(e+7)}', ('B', e))]
        for b in range(32): ds.done.add(('A', b))
        acc = {0: 16, 1: 20, 2: 24, 3: 28, 4: 16, 5: 20, 6: 48, 7: 52}
        def mf(j, b, e):
            if b is not None: ds.need(('A', b))
            ds.need(('B', e))
            c = f'v[{acc[j]}:{acc[j]+3}]'
            if b is None: a(f'v_mfma_f32_16x16x32_bf16 {c}, v[32:35], {Breg[e]}, 0')
            else: a(f'v_mfma_f32_16x16x32_bf16 {c}, {Areg[b]}, {Breg[e]}, {c}')
        def run(mfs, fill, per=1):
            fill = list(fill)
            for m_ in mfs:
                mf(*m_)
                for _ in range(per):
                    if fill: fill.pop(0)()
            while fill: fill.pop(0)()
        L = lambda items: [(lambda it=it: ds.op(*it)) for it in items]
        nop = lambda: None
        def epi(c, tiles, tmp):
            F = []
            buf = (c & 1) * 4096
            for jj, j in enumerate(tiles):
                r = acc[j]
                F.append(lambda r=r, jj=jj: a(f'v_cvt_pk_bf16_f32 v{tmp+2*jj}, v{r}, v{r+1}\nv_cvt_pk_bf16_f32 v{tmp+2*jj+1}, v{r+2}, v{r+3}'))
                F.append(lambda jj=jj: ds.op(f'ds_write_b64 v66, v[{tmp+2*jj}:{tmp+2*jj+1}] offset:{buf + 2048*jj}', ('W', c, jj)))
            return F
        def epi2(c, tmp):
            buf = (c & 1) * 4096
            F = [lambda: ds.op(f'ds_read_b64_tr_b16 v[{tmp}:{tmp+1}], v67 offset:{buf}', None),
                 lambda: ds.op(f'ds_read_b64_tr_b16 v[{tmp+2}:{tmp+3}], v69 offset:{buf}', ('R', c))]
            return F
        def ystore(c, tmp):
            def f():
                ds.need(('R', c))
                a(f'buffer_store_dwordx4 v[{tmp}:{tmp+3}], v68, {WS_}, {sO1} offen sc1\ns_add_u32 {sO1}, {sO1}, {32*20480}')
            return f
        def bar(tag):
            def f():
                ds.need(tag); a('s_barrier')
            return f
        def yflag(n):
            def f():
                a(f's_waitcnt vmcnt({n})'); self.flag(sO2); a(f's_add_u32 {sO2}, {sO2}, {640*128}')
            return f
        def w1i(n):
            F = [lambda: a(f's_lshl_b32 {t0}, {W}, 10\ns_add_u32 m0, {t0}, {L_W1}')]
            for i in range(n):
                F.append(lambda: a(f'buffer_load_dwordx4 v64, {W1_}, {sW1o} offen lds\ns_add_u32 m0, m0, 4096\ns_add_u32 {sW1o}, {sW1o}, {16*3456}'))
            return F
        def w1c(ks0, n):
            F = []
            for i in range(n):
                r = 72 + 4 * (ks0 + i)
                o = 4096 * ((ks0 + i) & 15)
                F += L([(f'ds_read_b64_tr_b16 v[{r}:{r+1}], v65 offset:{o}', None),
                        (f'ds_read_b64_tr_b16 v[{r+2}:{r+3}], v65 offset:{o+512}', ('W1', ks0 + i))])
            return F
        l0 = []
        for r in range(8): l0 += ldB(-r) + ldB(8 - r)
        l1 = []
        for r in range(8): l1 += ldB(16 - r) + ldB(24 - r)
        for it in l0[:4]: ds.op(*it)
        m0_ = [(0, None, 0), (1, None, 8)]
        for r in range(8): m0_ += [(0, r, -r), (1, r, 8 - r), (1, 8 + r, -r)]
        run(m0_, L(l0[4:] + l1))
        self.stamp(6)
        slots = [f'v[{200+4*k}:{203+4*k}]' for k in range(8)]
        def extras(r, sl):
            it = []
            for k in range(4):
                Areg[8*(4+k) + r] = sl[k]; Breg[8*(4+k) - r] = sl[4+k]
            for k in range(4): it += ldB(8*(4+k) - r) + ldA(8*(4+k) + r)
            return it
        m1 = [(2, None, 16), (3, None, 24)]
        for r in range(8):
            for j in (2, 3):
                for be in range(j + 1): m1.append((j, 8*be + r, 8*(j-be) - r))
        F = [nop, nop] + epi(0, (0, 1), 56) + [nop, nop, bar(('W', 0, 1))] + epi2(0, 60) + [nop]*4 + [ystore(0, 60)]
        F += w1i(16) + L(extras(0, slots)) + [nop] * 14 + [yflag(16)]
        run(m1, F)
        self.stamp(7)
        slots1 = [f'v[{232+4*k}:{235+4*k}]' for k in range(6)] + ['v[40:43]', 'v[44:47]']
        for r in range(8):
            mm = []
            prs = [(be, ga) for be in range(8) for ga in range(8) if 4 <= be + ga <= 7]
            prs.sort(key=lambda p: max(p))
            if r == 0:
                mm += [(j, None, 8*j) for j in (4, 5, 6, 7)]
            mm += [(be + ga, 8*be + r, 8*ga - r) for be, ga in prs]
            F = []
            if r == 0: F += [nop, nop] + epi(1, (2, 3), 56) + [nop, nop, bar(('W', 1, 1))] + epi2(1, 60) + [nop]*3 + [ystore(1, 60)]
            if r < 7:
                if r == 0: sl = slots1
                else:
                    p = r - 1
                    sl = [Areg[8*k + p] for k in range(4)] + [Breg[8*k - p] for k in range(4)]
                F += L(extras(r + 1, sl))
            if r == 2: F += [yflag(0), lambda: a('s_barrier')] + w1c(16, 6)
            if r == 3: F += w1c(22, 7)
            if r == 4: F += w1c(29, 3) + [bar(('W1', 31))] + w1i(8)[:7]
            if r == 5: F += w1i(8)[7:]
            run(mm, F)
        self.stamp(8)
        for f in epi(2, (4, 5), 56) + epi(3, (6, 7), 60): f()
        bar(('W', 3, 1))()
        for f in epi2(2, 56) + epi2(3, 60) + [ystore(2, 56), ystore(3, 60)]: f()
        a('s_waitcnt vmcnt(2)\ns_barrier')
        for f in w1c(32, 8): f()
        yflag(1)(); yflag(1)()
        a('s_waitcnt lgkmcnt(0)\ns_barrier')
        self.stamp(9)

    def ln_setup(self):
        a = self.a
        a(f'''
        s_lshl_b32 {t0}, {X}, 2
        s_add_u32 {G}, {t0}, {II}
        s_sub_u32 {G}, {G}, 28             ; TL
        v_and_b32 v16, 3, v0
        s_lshl_b32 {t0}, {W}, 2
        v_add_u32 v16, {t0}, v16
        v_lshrrev_b32 v17, 2, v0           ; kappa
        v_mul_u32_u24 v18, 160, v16
        ''')
        for u in range(5):
            a(f'''
            v_add_u32 v19, {16*u}, v17
            v_mul_u32_u24 v20, 205, v19
            v_lshrrev_b32 v20, 11, v20
            v_mul_u32_u24 v20, {2560-160}, v20
            v_lshl_add_u32 v20, v19, 4, v20
            v_add_u32 v{172+u}, v20, v18
            ''')
        a(f'''
        v_mul_u32_u24 v18, 1280, v16
        v_lshl_add_u32 v177, v17, 4, v18
        v_and_b32 v18, 7, v16
        v_lshlrev_b32 v18, 4, v18
        v_lshl_add_u32 v18, v17, 8, v18
        v_lshrrev_b32 v19, 3, v16
        v_lshl_add_u32 v178, v19, 3, v18
        v_min_u32 v18, 39, v0
        s_mul_i32 {t0}, {W}, 40
        v_add_u32 v18, {t0}, v18
        v_lshlrev_b32 v179, 7, v18
        v_and_b32 v18, 7, v0
        s_lshl_b32 {t0}, {W}, 3
        v_add_u32 v18, {t0}, v18
        v_lshlrev_b32 v180, 7, v18
        ''')
    def red(self, r):
        self.a(f'''
        v_add_f32_dpp v{r}, v{r}, v{r} row_ror:4 row_mask:0xf bank_mask:0xf
        v_add_f32_dpp v{r}, v{r}, v{r} row_ror:8 row_mask:0xf bank_mask:0xf
        v_mov_b32 v{r+1}, v{r}
        v_permlane16_swap_b32 v{r}, v{r+1}
        v_add_f32 v{r}, v{r}, v{r+1}
        v_mov_b32 v{r+1}, v{r}
        v_permlane32_swap_b32 v{r}, v{r+1}
        v_add_f32 v{r}, v{r}, v{r+1}
        ''')
    def ln_subs(self):
        a = self.a
        P = lambda k: f'v[{72+2*k}:{73+2*k}]'
        a('LN_ST:')
        a(f'v_pk_add_f32 v[182:183], {P(0)}, {P(1)}\nv_pk_add_f32 v[184:185], {P(2)}, {P(3)}')
        for k in range(4, 20):
            r = 182 + 2 * (k & 1)
            a(f'v_pk_add_f32 v[{r}:{r+1}], v[{r}:{r+1}], {P(k)}')
        a('v_pk_add_f32 v[182:183], v[182:183], v[184:185]\nv_add_f32 v182, v182, v183')
        self.red(182)
        a(f'v_mul_f32 v182, {hex(f2u(1/640))}, v182')
        for k in range(20):
            a(f'v_pk_add_f32 {P(k)}, {P(k)}, v[182:183] op_sel_hi:[1,0] neg_lo:[0,1] neg_hi:[0,1]')
            if k >= 1:
                j = k - 1; r = 184 + 2 * (j & 1)
                if j < 2: a(f'v_pk_mul_f32 v[{r}:{r+1}], {P(j)}, {P(j)}')
                else: a(f'v_pk_fma_f32 v[{r}:{r+1}], {P(j)}, {P(j)}, v[{r}:{r+1}]')
        a(f'''
        v_pk_fma_f32 v[186:187], {P(19)}, {P(19)}, v[186:187]
        v_pk_add_f32 v[184:185], v[184:185], v[186:187]
        v_add_f32 v184, v184, v185
        ''')
        self.red(184)
        a(f'''
        v_mov_b32 v185, {hex(f2u(1e-5))}
        v_fmac_f32 v185, {hex(f2u(1/640))}, v184
        v_rsq_f32 v184, v185
        s_nop 0
        s_setpc_b64 {RET2}
        ''')
        a('LN_FIN:')
        for k in range(20):
            r = 188 + 2 * (k & 3)
            a(f'''
            v_lshlrev_b32 v{r}, 16, v{112+k}
            v_and_b32 v{r+1}, 0xffff0000, v{112+k}
            v_pk_fma_f32 v[{r}:{r+1}], v[{r}:{r+1}], v[184:185], 1.0 op_sel_hi:[1,0,0]
            v_pk_fma_f32 {P(k)}, {P(k)}, v[{r}:{r+1}], v[182:183] op_sel_hi:[1,1,0]
            ''')
        for k in range(20): a(f'v_cvt_pk_bf16_f32 v{132+k}, v{72+2*k}, v{73+2*k}')
        a(f's_call_b64 {RET2}, LN_ST')
        for k in range(20):
            a(f'v_pk_mul_f32 {P(k)}, {P(k)}, v[184:185] op_sel_hi:[1,0]')
            if k: a(f'v_cvt_pk_bf16_f32 v{152+k-1}, v{72+2*k-2}, v{73+2*k-2}')
            if k % 4 == 1 and k > 4:
                u = k // 4 - 1
                a(f'buffer_store_dwordx4 v[{152+4*u}:{155+4*u}], v177, {WS_}, {sO2} offen offset:{256*u} sc1')
        a(f'''
        v_cvt_pk_bf16_f32 v171, v110, v111
        buffer_store_dwordx4 v[168:171], v177, {WS_}, {sO2} offen offset:1024 sc1
        ''')
        for u in range(5):
            a(f'buffer_store_dwordx4 v[{132+4*u}:{135+4*u}], v{172+u}, {WS_}, {sO1} offen sc1')
        self.stampn(42)
        a('s_waitcnt vmcnt(0)')
        self.flag(sFH)
        a(f's_setpc_b64 {RET}')
    def ln_unpack(self, src):
        for k in range(20):
            self.a(f'v_lshlrev_b32 v{72+2*k}, 16, v{src+k}\nv_and_b32 v{73+2*k}, 0xffff0000, v{src+k}')
    def ln_yload(self):
        a = self.a
        for u in range(5):
            for h in range(2):
                a(f'buffer_load_dwordx2 v[{112+4*u+2*h}:{113+4*u+2*h}], v178, {WS_}, {t2} offen offset:{128*h} sc1')
            if u < 4: a(f's_add_u32 {t2}, {t2}, 4096')
    def ln_offs(self, layer):
        self.a(f'''
        s_lshl_b32 {t1}, {N}, 5
        s_add_u32 {t1}, {t1}, {G}
        s_mul_i32 {t0}, {t1}, 20480
        s_add_u32 {sO1}, {t0}, {XB + layer*SZ}
        s_add_u32 {sO2}, {t0}, {AB + layer*SZ}
        s_add_u32 {t2}, {t0}, {YB}
        s_lshl_b32 {t3}, {t1}, 2
        s_add_u32 {t3}, {t3}, {W}
        s_lshl_b32 {t3}, {t3}, 7
        s_add_u32 {sFH}, {t3}, {FA + layer*4*128*128}
        ''')
    def ln1(self):
        a = self.a
        self.ln_offs(0)
        for u in range(5): a(f'buffer_load_dwordx4 v[{132+4*u}:{135+4*u}], v177, {Q_}, {t0} offen offset:{256*u}')
        a(f'''
        s_lshl_b32 {t3}, {N}, 2
        s_lshr_b32 {t4}, {G}, 3
        s_add_u32 {t3}, {t3}, {t4}
        s_mul_i32 {t3}, {t3}, {160*128}
        s_add_u32 {t3}, {t3}, {FY}
        s_waitcnt vmcnt(0)
        ''')
        self.stampn(30)
        self.ln_unpack(132)
        a(f's_call_b64 {RET2}, LN_ST')
        self.stampn(34)
        self.poll('v179', t3)
        a('s_barrier')
        self.stampn(10)
        self.ln_yload()
        a(f's_waitcnt vmcnt(0)')
        self.stampn(38)
        a(f's_call_b64 {RET}, LN_FIN')
        self.stampn(14)
    def ln2(self):
        a = self.a
        self.ln_offs(1)
        a(f's_add_u32 {t4}, {t0}, {XB}')
        for u in range(5): a(f'buffer_load_dwordx4 v[{132+4*u}:{135+4*u}], v{172+u}, {WS_}, {t4} offen sc1')
        self.ln_yload()
        a(f'''
        s_lshl_b32 {t3}, {t1}, 12
        s_add_u32 {t3}, {t3}, {FF}
        s_add_u32 {t4}, {t0}, {FB}
        s_waitcnt vmcnt(10)
        ''')
        self.ln_unpack(132)
        self.poll('v180', t3)
        self.stampn(18)
        for u in range(5): a(f'buffer_load_dwordx4 v[{152+4*u}:{155+4*u}], v{172+u}, {WS_}, {t4} offen sc1')
        for k in range(20):
            if k % 4 == 0: a(f's_waitcnt vmcnt({4 - k//4})')
            r = 188 + 2 * (k & 3)
            a(f'''
            v_lshlrev_b32 v{r}, 16, v{152+k}
            v_and_b32 v{r+1}, 0xffff0000, v{152+k}
            v_pk_add_f32 v[{72+2*k}:{73+2*k}], v[{72+2*k}:{73+2*k}], v[{r}:{r+1}]
            ''')
        a(f's_call_b64 {RET2}, LN_ST\ns_call_b64 {RET}, LN_FIN')
        self.stampn(22)

    def gelu_ops(self, acc):
        c1, c2 = -2.0*0.7978845608028654*1.4426950408889634, -2.0*0.7978845608028654*1.4426950408889634*0.044715
        O = []
        for p in range(4):
            g = acc + 2 * p; u = g + 8
            O += [f'v_pk_mul_f32 v[68:69], v[{g}:{g+1}], v[{g}:{g+1}]',
                  f'v_pk_mul_f32 v[{u}:{u+1}], v[{g}:{g+1}], v[{u}:{u+1}]',
                  f'v_pk_fma_f32 v[68:69], v[68:69], s[100:101], v[70:71] op_sel_hi:[1,0,0]',
                  f'v_pk_mul_f32 v[{g}:{g+1}], v[{g}:{g+1}], v[68:69]',
                  f'v_exp_f32 v{g}, v{g}', f'v_exp_f32 v{g+1}, v{g+1}',
                  f'v_pk_add_f32 v[{g}:{g+1}], v[{g}:{g+1}], 1.0 op_sel_hi:[1,0]',
                  f'v_rcp_f32 v{g}, v{g}', f'v_rcp_f32 v{g+1}, v{g+1}',
                  f'v_pk_mul_f32 v[{u}:{u+1}], v[{u}:{u+1}], v[{g}:{g+1}]',
                  f'v_cvt_pk_bf16_f32 v{64+p}, v{u}, v{u+1}']
        return O
    def a_dma(self, slot, soff, srd=WS_):
        O = [f's_add_u32 m0, {sMA}, {slot}']
        for cb in range(10):
            O.append(f'buffer_load_dwordx4 v6, {srd}, {soff} offen offset:{128*cb} sc1 lds' + ('\ns_add_u32 m0, m0, 896' if cb < 9 else ''))
        return O
    def h_dma(self, soff, srd=WS_):
        O = [f's_mov_b32 m0, {sMH}']
        for k in range(14):
            s_ = f'buffer_load_dwordx4 v1, {srd}, {soff} offen offset:{1024*(k&3)} sc1 lds'
            if k & 3 == 3: s_ += f'\ns_add_u32 m0, m0, 4096\ns_add_u32 {soff}, {soff}, 4096'
            O.append(s_)
        return O
    def q_unit(self, slot, acc, fill):
        a = self.a; ds = DS(a)
        rd = lambda ks: ds.op(f'ds_read_b128 v[{48+4*(ks&3)}:{51+4*(ks&3)}], v{2+(ks&3)} offset:{slot + 1024*(ks>>2)}', ks)
        for ks in range(3): rd(ks)
        fill = list(fill); nf = len(fill); k = 0
        for ks in range(40):
            ds.need(ks)
            c = f'v[{acc}:{acc+15}]'
            a(f'v_mfma_f32_32x32x16_bf16 {c}, v[{72+4*ks}:{75+4*ks}], v[{48+4*(ks&3)}:{51+4*(ks&3)}], {c if ks else 0}')
            if ks + 3 < 40: rd(ks + 3)
            while k < nf and (ks >= 1) and k < (ks * nf + 36) // 37: a(fill[k]); k += 1
        while k < nf: a(fill[k]); k += 1
    def q_simple(self):
        a = self.a
        a(f'''
        s_lshl_b32 {t0}, {N}, 14
        s_add_u32 {sPA}, {t0}, {FA}
        s_lshl_b32 {t0}, {N}, 3
        s_add_u32 {t0}, {t0}, {G}          ; n*8+g
        s_mul_i32 {t1}, {t0}, {64*1280}
        s_add_u32 {sAD}, {t1}, {AB}
        s_add_u32 {sQB}, {sAD}, {32*1280}
        s_mul_i32 {t1}, {t0}, {4*HST}
        s_lshl_b32 {t2}, {FS}, 2
        s_add_u32 {t2}, {t2}, {W}
        s_lshl_b32 {t3}, {t2}, 9
        s_add_u32 {t1}, {t1}, {t3}
        s_add_u32 {sQH}, {t1}, {HB}
        s_mul_i32 {t0}, {t0}, 112
        s_add_u32 {t0}, {t0}, {t2}
        s_lshl_b32 {t0}, {t0}, 7
        s_add_u32 {sFH}, {t0}, {FH}
        ''')
        self.poll('v10', sPA)
        self.stampn(10)
        for o in self.a_dma(L_A, sAD) + self.a_dma(L_B, sQB): a(o)
        a('s_waitcnt vmcnt(10)\ns_barrier')
        self.stampn(34)
        self.q_unit(L_A, 16, [])
        a('s_waitcnt vmcnt(0)\ns_barrier')
        self.q_unit(L_B, 32, self.gelu_ops(16) + [f'buffer_store_dwordx4 v[64:67], v8, {WS_}, {sQH} offen sc1', f's_add_u32 {sQH}, {sQH}, {2*HST}'])
        for o in self.gelu_ops(32): a(o)
        a(f'buffer_store_dwordx4 v[64:67], v8, {WS_}, {sQH} offen sc1')
        self.stampn(42)
        a('s_barrier\ns_waitcnt vmcnt(0)')
        self.flag(sFH)
        self.stampn(18)
    def g_sub(self):
        a = self.a
        a('G_SUB:')
        a(f'''
        s_lshl_b32 {t0}, {sXH}, 3
        s_add_u32 {t0}, {t0}, {X}
        s_mul_i32 {t0}, {t0}, 112
        s_mul_i32 {t1}, {W}, 28
        s_add_u32 {t0}, {t0}, {t1}
        s_lshl_b32 {t0}, {t0}, 7
        s_add_u32 {sPH}, {t0}, {FH}
        s_lshl_b32 {t0}, {sXH}, 5
        s_add_u32 {t0}, {t0}, {T}          ; m*32+T
        s_mul_i32 {t1}, {t0}, {HST}
        s_mul_i32 {t2}, {W}, 14336
        s_add_u32 {t1}, {t1}, {t2}
        s_add_u32 {sHD}, {t1}, {HB}
        s_and_b32 {t0}, {t0}, 127          ; c*32+T
        s_lshl_b32 {t1}, {t0}, 3
        s_add_u32 {t1}, {t1}, {S}
        s_mul_i32 {t1}, {t1}, 2560
        s_mul_i32 {t2}, {W}, 640
        s_add_u32 {t1}, {t1}, {t2}
        s_add_u32 {sO1}, {t1}, {FB}
        s_add_u32 {sXA}, {t1}, {XB + SZ}
        s_mul_i32 {t1}, {t0}, 20480
        s_mul_i32 {t2}, {S}, 160
        s_add_u32 {sO2}, {t1}, {t2}
        s_lshl_b32 {t1}, {t0}, 2
        s_add_u32 {t1}, {t1}, {W}
        s_lshl_b32 {t1}, {t1}, 3
        s_add_u32 {t1}, {t1}, {S}
        s_lshl_b32 {t1}, {t1}, 7
        s_add_u32 {sPF}, {t1}, {FF}
        ''')
        self.stamp(50)
        self.poll('v9', sPH)
        self.stamp(51)
        for o in self.h_dma(sHD): a(o)
        a(f'''
        buffer_load_dwordx4 v[60:63], v1, {WS_}, {sXA} offen sc1
        s_waitcnt vmcnt(1)
        ''')
        self.stamp(52)
        ds = DS(a)
        rd = lambda ks: ds.op(f'ds_read_b128 v[{48+4*(ks%3)}:{51+4*(ks%3)}], v7 offset:{1024*ks}', ks)
        rd(0); rd(1)
        for ks in range(14):
            if ks == 12: a(f's_cmp_eq_u32 {W}, 3\ns_cbranch_scc1 G_RED')
            ds.need(ks)
            for j in range(5):
                c = f'v[{16+4*j}:{19+4*j}]'
                a(f'v_mfma_f32_16x16x32_bf16 {c}, {self.wd_reg(ks, j)}, v[{48+4*(ks%3)}:{51+4*(ks%3)}], {c if ks else 0}')
                if j == 0 and ks + 2 < 14: rd(ks + 2)
        a('G_RED:\ns_nop 7')
        self.stamp(53)
        a('s_barrier')
        for j in range(5): a(f'ds_write_b128 v11, v[{16+4*j}:{19+4*j}] offset:{64*j}')
        a('s_waitcnt lgkmcnt(0)\ns_barrier')
        for p in range(4):
            a(f'ds_read_b128 v[{16+8*p}:{19+8*p}], v12 offset:{5376*p}\nds_read_b128 v[{20+8*p}:{23+8*p}], v12 offset:{5376*p+16}')
        a('s_waitcnt lgkmcnt(4)')
        for k in range(4): a(f'v_pk_add_f32 v[{16+2*k}:{17+2*k}], v[{16+2*k}:{17+2*k}], v[{24+2*k}:{25+2*k}]')
        a('s_waitcnt lgkmcnt(0)')
        for k in range(4): a(f'v_pk_add_f32 v[{32+2*k}:{33+2*k}], v[{32+2*k}:{33+2*k}], v[{40+2*k}:{41+2*k}]')
        for k in range(4): a(f'v_pk_add_f32 v[{16+2*k}:{17+2*k}], v[{16+2*k}:{17+2*k}], v[{32+2*k}:{33+2*k}]')
        self.stamp(54)
        a(f'''
        s_mov_b32 exec_hi, 0xff
        s_cmp_ge_u32 {sXH}, 4
        s_cbranch_scc1 G_OUT
        ''')
        for k in range(4): a(f'v_cvt_pk_bf16_f32 v{64+k}, v{16+2*k}, v{17+2*k}')
        a(f'''
        buffer_store_dwordx4 v[64:67], v1, {WS_}, {sO1} offen sc1
        s_waitcnt vmcnt(0)
        ''')
        self.flag(sPF)
        a(f's_setpc_b64 {RET}\nG_OUT:\ns_waitcnt vmcnt(0)')
        for k in range(4):
            a(f'''
            v_lshlrev_b32 v32, 16, v{60+k}
            v_and_b32 v33, 0xffff0000, v{60+k}
            v_pk_add_f32 v[{16+2*k}:{17+2*k}], v[{16+2*k}:{17+2*k}], v[32:33]
            v_cvt_pk_bf16_f32 v{64+k}, v{16+2*k}, v{17+2*k}
            ''')
        a(f'''
        buffer_store_dwordx4 v[64:67], v13, {OUT_}, {sO2} offen
        s_mov_b32 exec_hi, -1
        s_setpc_b64 {RET}
        ''')

    def wd_all(self):
        for l in ('WD_I0', 'WD_C0', 'WD_C1', 'WD_C2', 'WD_C3'): self.a(f's_call_b64 {RET2}, {l}')
        self.a('s_barrier')
    def main(self):
        a = self.a
        self.prologue()
        if self.stop == 'start': a('s_waitcnt vmcnt(0)\ns_branch DONE')
        self.p0()
        self.stamp(56)
        a(f'''
        s_bitcmp1_b32 {ROLE}, 0
        s_cbranch_scc1 R_G1
        s_waitcnt vmcnt(0)
        ''')
        self.flag(t4)
        self.stamp(2)
        a('s_barrier')
        a(f'''
        s_bitcmp1_b32 {ROLE}, 2
        s_cbranch_scc1 R_LN
        ''')
        self.wd_all()
        a(f'''
        s_mov_b32 {sXH}, 0
        G2_LOOP:
        s_call_b64 {RET}, G_SUB
        s_add_u32 {sXH}, {sXH}, 1
        s_cmp_lt_u32 {sXH}, 8
        s_cbranch_scc1 G2_LOOP
        s_branch DONE
        ''')
        a('R_LN:')
        self.ln_setup()
        self.wd_all()
        self.stamp(3)
        a(f's_mov_b32 {N}, 0\nLN1_LOOP:')
        self.ln1()
        a(f'''
        s_add_u32 {N}, {N}, 1
        s_cmp_lt_u32 {N}, 4
        s_cbranch_scc1 LN1_LOOP
        s_mov_b32 {sXH}, 0
        LN2_LOOP:
        s_call_b64 {RET}, G_SUB
        s_sub_u32 {N}, {sXH}, 1
        s_add_u32 {sXH}, {sXH}, 1
        s_cmp_ge_u32 {N}, 4
        s_cbranch_scc1 LN2_SKIP
        ''')
        self.ln2()
        a(f'''
        LN2_SKIP:
        s_cmp_lt_u32 {sXH}, 8
        s_cbranch_scc1 LN2_LOOP
        s_branch DONE
        ''')
        a('R_G1:')
        self.w1_setup()
        self.w1_issue(16)
        a(f'''
        s_bitcmp1_b32 {ROLE}, 1
        s_cbranch_scc1 R_CONV
        s_waitcnt vmcnt(16)
        ''')
        self.flag(t4)
        self.stamp(2)
        self.w1_consume(0, 16); self.w1_issue(16); self.w1_consume(16, 16); self.w1_issue(8); self.w1_consume(32, 8)
        a('s_branch G1_MAIN\nR_CONV:\ns_waitcnt vmcnt(16)')
        self.flag(t4)
        self.stamp(2)
        self.hbuild()
        self.stamp(57)
        self.w1_consume(0, 16)
        self.stamp(3)
        self.conv()
        a('G1_MAIN:')
        self.wd_all()
        a(f's_mov_b32 {sC2}, {hex(f2u(-2.0*0.7978845608028654*1.4426950408889634*0.044715))}')
        a(f's_mov_b32 s101, {sC2}')
        a(f'v_mov_b32 v70, {hex(f2u(-2.0*0.7978845608028654*1.4426950408889634))}')
        a(f's_mov_b32 {N}, 0\nG1_LOOP:')
        self.q_simple()
        a(f'''
        s_sub_u32 {sXH}, {N}, 1
        s_cbranch_scc1 G1_NOG
        s_call_b64 {RET}, G_SUB
        G1_NOG:
        ''')
        self.stampn(26)
        a(f'''
        s_add_u32 {N}, {N}, 1
        s_cmp_lt_u32 {N}, 8
        s_cbranch_scc1 G1_LOOP
        s_mov_b32 {sXH}, 7
        s_call_b64 {RET}, G_SUB
        DONE:
        ''')
        self.stamp(62)
        if self.timers:
            a(f'''
            s_memrealtime {TM}
            s_waitcnt lgkmcnt(0)
            v_writelane_b32 v71, s96, 61
            s_lshl_b32 {t0}, s2, 2
            s_add_u32 {t0}, {t0}, {W}
            s_lshl_b32 {t0}, {t0}, 8
            s_add_u32 {t0}, {t0}, {TIM}
            v_lshlrev_b32 v16, 2, v0
            buffer_store_dword v71, v16, {WS_}, {t0} offen
            ''')
        if self.dbg:
            a(f'''
            s_memrealtime s[98:99]
            s_load_dwordx2 s[4:5], s[0:1], 88
            s_mov_b32 s6, 256
            s_waitcnt lgkmcnt(0)
            s_not_b32 s96, s96
            v_mov_b32 v16, s98
            v_mov_b32 v17, s96
            s_mov_b64 exec, 1
            buffer_atomic_umax v16, off, s[4:7], 0
            buffer_atomic_umax v17, off, s[4:7], 0 offset:4
            s_mov_b64 exec, -1
            ''')
        a(f'''
        s_or_b32 {t0}, s2, {W}
        s_cbranch_scc1 FIN
        ''')
        self.flag('0')
        a('''
        FIN:
        s_waitcnt vmcnt(0)
        EXIT:
        s_endpgm
        ''')
        self.g_sub(); self.ln_subs(); self.wd_subs()

def build(path, **kw):
    g = Gen(**kw); g.main()
    ref = open('interleave_layers__ssm_conv_h3__geglu_ffn__prompt.s.ref').read().split('\n')
    hdr = [l for l in ref if l.startswith(';') and '@launch' not in l]
    hdr = hdr[:14] + ['; @launch grid=(256,1,1) block=(256,1,1) lds=163840']
    txt = '\n'.join(hdr) + f'\n.amdgcn_target "amdgcn-amd-amdhsa--gfx950"\n.text\n.globl {KN}\n.p2align 8\n.type {KN},@function\n{KN}:\n'
    txt += g.a.text() + kern_desc(KN)
    open(path, 'w').write(txt)
    print(path, 'lines', txt.count('\n'), 'nops', g.a.nops)

if __name__ == '__main__':
    build('k_t.s', timers=True)
    build('k.s')
    build('k_d.s', dbg=True)
    build('k0_t.s', timers=True, stop_after='start')
```

```python
import sys, struct, re
from asm2 import *

def f2u(f): return struct.unpack('<I', struct.pack('<f', f))[0]

FP0 = 0x1000; FY = FP0 + 0x20000; FA = FY + 0x50000; FH = FA + 0x20000; FF = FH + 0xE0000
TIM = FF + 0x80000; DUMMY = TIM + 0x40000
UT = 0x300000; YB = 0x600000; AB = 0x900000; XB = 0xE00000; FB = 0x1300000; HB = 0x1600000
WS_SIZE = 0x2400000
SZ = 0x280000
HST = 57344
L_A = 0; L_B = 40960; L_H = 81920; L_R = 139264
L_CW = 21248; L_U = 16640; L_W1 = 84992; L_X = 153600; L_WD = 81920
K_, V_, SK_, H_, D_, Q_, WG_, WU_, WD_, OUT_, WS_ = [f's[{4*i+4}:{4*i+7}]' for i in range(11)]
TAG, W, X, II, T, S, G, FS = [f's{i}' for i in range(48, 56)]
WSB = 's[56:59]'; WSD = 's[60:63]'; W1_ = 's[64:67]'
N = 's68'; CNT = 's69'
sQB, sQH, sPF, sPH, sXH, sHD, sFH, sPA, sXA, sAD, sO1, sO2 = [f's{i}' for i in range(70, 82)]
sMA = 's82'
sMH = 's83'
sWDo = 's84'
sW1o = 's85'
t0, t1, t2, t3, t4, t5 = [f's{i}' for i in range(86, 92)]
RET = 's[92:93]'; RET2 = 's[94:95]'
TM = 's[96:97]'
ROLE = 's98'
sC2 = 's100'
LIMIT = 0x10000

class DS:
    def __init__(self, a): self.a = a; self.q = []; self.done = set()
    def op(self, txt, tag=None):
        self.a(txt); self.q.append(tag)
    def need(self, tag):
        if tag in self.done: return
        i = self.q.index(tag)
        n = len(self.q) - 1 - i
        k = min(n, 15)
        self.a(f's_waitcnt lgkmcnt({k})')
        cut = len(self.q) - k
        for t_ in self.q[:cut]: self.done.add(t_)
        self.q = self.q[cut:]

class Gen:
    def __init__(self, timers=False, stop_after=None, dbg=False):
        self.a = Asm(); self.timers = timers; self.stop = stop_after; self.dbg = dbg
        self.nst = 0
    def stamp(self, k):
        if not self.timers: return
        self.a(f'''
        s_memtime {TM}
        s_waitcnt lgkmcnt(0)
        v_writelane_b32 v71, s96, {k}
        ''')
    def stampn(self, base, mul=1):
        if not self.timers: return
        self.a(f'''
        s_memtime {TM}
        s_mul_i32 s99, {N}, {mul}
        s_add_u32 m0, s99, {base}
        s_waitcnt lgkmcnt(0)
        v_writelane_b32 v71, s96, m0
        ''')
    def poll(self, vaddr, soff, srd=WS_, exp=TAG):
        a = self.a; L = a.label('POLL'); D = a.label('PDONE')
        a(f'''
        s_mov_b32 {CNT}, {LIMIT}
        {L}:
        buffer_load_dword v14, {vaddr}, {srd}, {soff} offen sc1
        s_waitcnt vmcnt(0)
        v_cmp_ne_u32 vcc, {exp}, v14
        s_cbranch_vccz {D}
        s_sub_u32 {CNT}, {CNT}, 1
        s_cbranch_scc0 {L}
        {D}:
        ''')
    def flag(self, soff):
        self.a(f'''
        s_mov_b64 exec, 1
        buffer_store_dword v15, off, {WS_}, {soff} sc1
        s_mov_b64 exec, -1
        ''')

    def prologue(self):
        a = self.a
        a(f'''
        s_cmp_ge_u32 s2, 256
        s_cbranch_scc1 EXIT
        s_load_dwordx2 s[4:5], s[0:1], 8
        s_load_dwordx2 s[8:9], s[0:1], 16
        s_load_dwordx2 s[12:13], s[0:1], 24
        s_load_dwordx2 s[44:45], s[0:1], 96
        s_load_dwordx2 s[16:17], s[0:1], 32
        s_load_dwordx2 s[20:21], s[0:1], 40
        s_load_dwordx2 s[24:25], s[0:1], 0
        s_load_dwordx2 s[28:29], s[0:1], 56
        s_load_dwordx2 s[32:33], s[0:1], 64
        s_load_dwordx2 s[36:37], s[0:1], 72
        s_load_dwordx2 s[40:41], s[0:1], 80
        v_lshrrev_b32 v1, 6, v0
        v_and_b32 v0, 63, v0
        v_readfirstlane_b32 {W}, v1
        s_and_b32 {X}, s2, 7
        s_lshr_b32 {II}, s2, 3
        ''')
        if self.dbg and not self.timers: a(f's_memrealtime {TM}')
        if self.timers:
            a(f'''
            v_mov_b32 v71, 0
            s_memrealtime s[98:99]
            s_memtime {TM}
            s_waitcnt lgkmcnt(0)
            v_writelane_b32 v71, s96, 0
            v_writelane_b32 v71, s98, 63
            ''')
        sizes = [SZ, SZ, 5120, SZ, 1280, SZ, 640*1728*2, 640*1728*2, 640*1728*2, SZ, WS_SIZE]
        for i, z in enumerate(sizes):
            a(f's_mov_b32 s{4*i+6}, {z}\ns_mov_b32 s{4*i+7}, 0x00020000')
        a(f'''
        v_mul_u32_u24 v16, 205, v0
        v_lshrrev_b32 v16, 11, v16
        v_mul_u32_u24 v17, 10, v16
        v_sub_u32 v17, v0, v17
        s_lshr_b32 {t0}, {II}, 3
        s_lshl_b32 {t1}, {X}, 2
        s_add_u32 {T}, {t1}, {t0}
        s_and_b32 {S}, {II}, 7
        s_lshl_b32 {t0}, {T}, 6
        s_lshl_b32 {t1}, {W}, 4
        s_add_u32 {t0}, {t0}, {t1}
        v_lshlrev_b32 v18, 2, v16
        v_add_u32 v18, {t0}, v18           ; t
        s_mul_i32 {t2}, {S}, 160
        v_mul_u32_u24 v19, 1280, v18
        v_lshl_add_u32 v19, v17, 4, v19
        v_add_u32 v19, {t2}, v19
        v_subrev_u32 v20, 3840, v19
        v_cmp_eq_u32 vcc, 0, v18
        v_mov_b32 v21, 0x40000000
        s_mul_i32 {t2}, {S}, 640
        v_cndmask_b32 v20, v20, v21, vcc
        v_lshlrev_b32 v21, 6, v17
        v_add_u32 v21, {t2}, v21
        s_waitcnt lgkmcnt(0)
        s_load_dword {TAG}, s[44:45], 0
        s_mov_b32 exec_lo, -1
        s_mov_b32 exec_hi, 0xff
        ''')
        for r in range(3): a(f'buffer_load_dwordx4 v[{72+4*r}:{75+4*r}], v20, {K_}, 0 offen offset:{1280*r}')
        for r in range(4): a(f'buffer_load_dwordx4 v[{84+4*r}:{87+4*r}], v19, {K_}, 0 offen offset:{1280*r}')
        for r in range(4): a(f'buffer_load_dwordx4 v[{100+4*r}:{103+4*r}], v19, {V_}, 0 offen offset:{1280*r}')
        for r in range(4): a(f'buffer_load_dwordx4 v[{116+4*r}:{119+4*r}], v21, {SK_}, 0 offen offset:{16*r}')
        a('s_mov_b64 exec, -1')
        a(f'''
        s_and_b32 {t0}, {X}, 1
        s_lshl_b32 {t0}, {t0}, 2
        s_and_b32 {t1}, {II}, 3
        s_add_u32 {G}, {t0}, {t1}
        s_lshr_b32 {t0}, {X}, 1
        s_mul_i32 {t0}, {t0}, 7
        s_lshr_b32 {t1}, {II}, 2
        s_add_u32 {FS}, {t0}, {t1}
        s_mov_b32 {ROLE}, 0
        s_cmp_lt_u32 {FS}, 27
        s_cselect_b32 {ROLE}, 1, 0
        s_cmp_lt_u32 {II}, 20
        s_cselect_b32 {t0}, 2, 0
        s_or_b32 {ROLE}, {ROLE}, {t0}
        s_cmp_ge_u32 {II}, 28
        s_cselect_b32 {ROLE}, 4, {ROLE}
        s_mov_b32 s56, s44
        s_mov_b32 s57, s45
        s_mov_b32 s58, 0
        s_mov_b32 s59, 0x00020000
        s_mov_b32 s60, s44
        s_mov_b32 s61, s45
        s_mov_b32 s62, 0
        s_mov_b32 s63, 0x00020000
        s_bitcmp1_b32 {W}, 0
        s_cselect_b32 s64, s32, s28
        s_cselect_b32 s65, s33, s29
        s_mov_b32 s66, {640*1728*2}
        s_mov_b32 s67, 0x00020000
        s_mul_i32 {sMA}, {W}, 10240
        s_mul_i32 {sMH}, {W}, 14336
        s_add_u32 {sMH}, {sMH}, {L_H}
        ''')
        a(f'''
        v_lshlrev_b32 v1, 4, v0
        v_and_b32 v22, 31, v0              ; t
        v_lshrrev_b32 v23, 5, v0           ; h
        v_lshrrev_b32 v24, 3, v22
        v_mul_u32_u24 v24, 10240, v24
        v_and_b32 v25, 7, v22
        v_lshl_add_u32 v24, v25, 7, v24
        v_bfe_u32 v25, v22, 1, 3           ; swz
        v_xor_b32 v25, v25, v23
        ''')
        for q in range(4):
            a(f'v_xor_b32 v26, {2*q}, v25\nv_lshl_add_u32 v{2+q}, v26, 4, v24')
        a(f'''
        v_lshrrev_b32 v24, 3, v0
        s_lshl_b32 {t0}, {W}, 3
        v_add_u32 v24, {t0}, v24
        v_bfe_u32 v25, v24, 1, 3
        v_and_b32 v26, 7, v0
        v_xor_b32 v25, v25, v26
        v_mul_u32_u24 v24, 1280, v24
        v_lshl_add_u32 v6, v25, 4, v24
        v_add_u32 v7, {sMH}, v1
        v_lshrrev_b32 v24, 4, v22
        v_mul_u32_u24 v24, {HST}, v24
        v_lshl_add_u32 v24, v23, 8, v24
        v_and_b32 v25, 15, v0
        v_lshl_add_u32 v8, v25, 4, v24
        s_cmp_eq_u32 {W}, 3
        s_cselect_b32 {t0}, 23, 27
        v_min_u32 v9, {t0}, v0
        v_lshlrev_b32 v9, 7, v9
        v_and_b32 v24, 1, v0
        v_bfe_u32 v26, v0, 1, 1
        v_lshl_add_u32 v24, v26, 3, v24
        s_lshl_b32 {t0}, {G}, 2
        s_lshr_b32 {t1}, {W}, 1
        s_add_u32 {t0}, {t0}, {t1}
        s_lshl_b32 {t0}, {t0}, 2
        s_and_b32 {t1}, {W}, 1
        s_lshl_b32 {t1}, {t1}, 1
        s_add_u32 {t0}, {t0}, {t1}
        v_add_u32 v24, {t0}, v24
        v_lshlrev_b32 v10, 7, v24
        v_mul_u32_u24 v24, 336, v25
        v_lshrrev_b32 v26, 4, v0
        v_lshl_add_u32 v24, v26, 4, v24
        s_mul_i32 {t0}, {W}, 5376
        s_add_u32 {t0}, {t0}, {L_R}
        v_add_u32 v11, {t0}, v24
        s_lshl_b32 {t0}, {W}, 2
        v_add_u32 v24, {t0}, v16
        v_min_u32 v24, 15, v24
        v_mul_u32_u24 v26, 336, v24
        v_lshl_add_u32 v26, v17, 5, v26
        v_add_u32 v12, {L_R}, v26
        v_mul_u32_u24 v26, 1280, v24
        v_lshl_add_u32 v13, v17, 4, v26
        s_waitcnt lgkmcnt(0)
        s_mul_i32 {TAG}, {TAG}, 0x9E3779B1
        s_add_u32 {TAG}, {TAG}, 0x7F4A7C15
        v_mov_b32 v15, {TAG}
        ''')

    def p0(self):
        a = self.a
        a(f'''
        s_mul_i32 {t0}, {X}, 20
        s_add_u32 {t0}, {t0}, {II}
        s_lshl_b32 {t0}, {t0}, 2
        s_add_u32 {t0}, {t0}, {W}
        s_lshl_b32 {t1}, {t0}, 12
        v_add_u32 v38, {t1}, v1
        v_subrev_u32 v39, 8, v38
        s_lshl_b32 {t1}, {t0}, 1
        v_mov_b32 v36, {t1}
        v_mov_b32 v40, 0
        v_mov_b32 v41, 0
        s_waitcnt vmcnt(0)
        ''')
        self.stamp(1)
        a(f'''
        s_bitcmp1_b32 {ROLE}, 1
        s_cbranch_scc0 P0_NOH
        s_mov_b64 exec, -2
        buffer_load_dwordx2 v[40:41], v39, {H_}, 0 offen
        s_mov_b64 exec, -1
        ''')
        for y in range(4):
            if y: a(f'buffer_load_dwordx2 v[{40+6*y}:{41+6*y}], v39, {H_}, 0 offen offset:{1024*y}')
            a(f'buffer_load_dwordx4 v[{42+6*y}:{45+6*y}], v38, {H_}, 0 offen offset:{1024*y}')
        a(f'''
        buffer_load_ushort v37, v36, {D_}, 0 offen
        P0_NOH:
        s_mov_b32 {t2}, 0x05040100
        s_mov_b32 {t3}, 0x07060302
        s_lshl_b32 {t0}, {W}, 1
        v_lshrrev_b32 v22, 1, v16
        v_add_u32 v22, {t0}, v22
        v_and_b32 v23, 7, v17
        v_xor_b32 v22, v22, v23
        v_lshlrev_b32 v22, 4, v22
        v_and_b32 v23, 1, v16
        v_lshl_add_u32 v22, v23, 3, v22
        v_lshl_add_u32 v22, v17, 10, v22
        v_add_u32 v22, {L_X}, v22
        s_mov_b32 exec_lo, -1
        s_mov_b32 exec_hi, 0xff
        ''')
        for j in range(8):
            d = j >> 1; sel = t3 if j & 1 else t2
            P = 132; U = 140 + 8 * (j & 1); VV = 156
            for s_ in range(1, 7):
                a(f'v_perm_b32 v{P+s_}, v{72+4*(s_-1)+d}, v{72+4*s_+d}, {sel}')
            for r in range(4):
                a(f'v_dot2_f32_bf16 v{U+r}, v{P+r+1}, v{117+2*j}, 0')
            for r in range(4):
                a(f'v_dot2_f32_bf16 v{U+r}, v{P+r+3}, v{116+2*j}, v{U+r}')
            for r in range(4):
                if j & 1: a(f'v_and_b32 v{VV+r}, 0xffff0000, v{100+4*r+d}')
                else: a(f'v_lshlrev_b32 v{VV+r}, 16, v{100+4*r+d}')
            a(f'''
            v_pk_mul_f32 v[{U}:{U+1}], v[{U}:{U+1}], v[{VV}:{VV+1}]
            v_pk_mul_f32 v[{U+2}:{U+3}], v[{U+2}:{U+3}], v[{VV+2}:{VV+3}]
            v_cvt_pk_bf16_f32 v{U+4}, v{U}, v{U+1}
            v_cvt_pk_bf16_f32 v{U+5}, v{U+2}, v{U+3}
            ds_write_b64 v22, v[{U+4}:{U+5}] offset:{128*j}
            ''')
        a(f'''
        s_mov_b64 exec, -1
        s_mul_i32 {t0}, {W}, 20
        v_lshrrev_b32 v22, 3, v0
        v_add_u32 v22, {t0}, v22
        v_and_b32 v23, 7, v0
        ''')
        for y in range(3):
            a(f'''
            v_add_u32 v24, {8*y}, v22
            v_bfe_u32 v25, v24, 3, 3
            v_xor_b32 v25, v25, v23
            v_lshlrev_b32 v25, 4, v25
            v_lshl_add_u32 v25, v24, 7, v25
            v_add_u32 v{26+y}, {L_X}, v25
            ''')
        a(f'''
        s_mul_i32 {t0}, {S}, 80
        v_add_u32 v22, {t0}, v22
        v_lshlrev_b32 v22, 12, v22
        v_lshl_add_u32 v22, v23, 4, v22
        s_lshl_b32 {t0}, {T}, 7
        s_add_u32 {t0}, {t0}, {UT}
        s_add_u32 {t1}, {t0}, 0x8000
        s_add_u32 {t2}, {t0}, 0x10000
        s_waitcnt lgkmcnt(0)
        ''')
        self.stamp(55)
        a(f'''
        s_barrier
        ds_read_b128 v[72:75], v26
        ds_read_b128 v[76:79], v27
        s_mov_b32 exec_hi, 0
        ds_read_b128 v[80:83], v28
        s_mov_b32 exec_hi, -1
        s_waitcnt lgkmcnt(2)
        buffer_store_dwordx4 v[72:75], v22, {WS_}, {t0} offen sc1
        s_waitcnt lgkmcnt(1)
        buffer_store_dwordx4 v[76:79], v22, {WS_}, {t1} offen sc1
        s_waitcnt lgkmcnt(0)
        s_mov_b32 exec_hi, 0
        buffer_store_dwordx4 v[80:83], v22, {WS_}, {t2} offen sc1
        s_mov_b32 exec_hi, -1
        s_lshl_b32 {t4}, {S}, 2
        s_add_u32 {t4}, {t4}, {W}
        s_lshl_b32 {t4}, {t4}, 5
        s_add_u32 {t4}, {t4}, {T}
        s_lshl_b32 {t4}, {t4}, 7
        s_add_u32 {t4}, {t4}, {FP0}
        ''')

    def w1_setup(self):
        self.a(f'''
        v_lshrrev_b32 v66, 3, v0
        v_bfe_u32 v67, v0, 4, 1
        v_lshlrev_b32 v67, 1, v67
        s_and_b32 {t0}, {W}, 1
        s_lshl_b32 {t0}, {t0}, 2
        v_or_b32 v67, {t0}, v67
        v_and_b32 v68, 7, v0
        v_xor_b32 v67, v67, v68
        v_mul_u32_u24 v66, 3456, v66
        v_lshl_add_u32 v64, v67, 4, v66
        s_lshr_b32 {t0}, {W}, 1
        s_mul_i32 {t0}, {t0}, {8*3456}
        s_lshl_b32 {sW1o}, {FS}, 7
        s_add_u32 {sW1o}, {sW1o}, {t0}
        v_lshrrev_b32 v66, 4, v0
        v_and_b32 v67, 1, v66              ; mat
        v_lshrrev_b32 v66, 1, v66          ; h
        v_lshlrev_b32 v66, 11, v66
        v_lshl_add_u32 v66, v67, 10, v66
        v_bfe_u32 v68, v0, 2, 2            ; r
        v_lshl_add_u32 v66, v68, 7, v66
        v_lshrrev_b32 v68, 1, v68
        v_lshl_add_u32 v68, v67, 1, v68    ; sigma
        v_xor_b32 v68, {W}, v68
        v_lshl_add_u32 v66, v68, 5, v66
        v_and_b32 v68, 3, v0
        v_lshl_add_u32 v66, v68, 3, v66
        v_add_u32 v65, {L_W1}, v66
        ''')
    def w1_issue(self, nks):
        a = self.a
        a(f's_lshl_b32 {t0}, {W}, 10\ns_add_u32 m0, {t0}, {L_W1}')
        for i in range(nks):
            a(f'''
            buffer_load_dwordx4 v64, {W1_}, {sW1o} offen lds
            s_add_u32 m0, m0, 4096
            s_add_u32 {sW1o}, {sW1o}, {16*3456}
            ''')
    def w1_consume(self, ks0, nks):
        a = self.a
        a('s_waitcnt vmcnt(0)\ns_barrier')
        for i in range(nks):
            r = 72 + 4 * (ks0 + i)
            a(f'ds_read_b64_tr_b16 v[{r}:{r+1}], v65 offset:{4096*i}')
            a(f'ds_read_b64_tr_b16 v[{r+2}:{r+3}], v65 offset:{4096*i+512}')
        a('s_waitcnt lgkmcnt(0)\ns_barrier')
    @staticmethod
    def wd_reg(ks, j):
        f = ks * 5 + j
        return f'a[{4*f}:{4*f+3}]' if f < 64 else f'v[{232+4*(f-64)}:{235+4*(f-64)}]'
    @staticmethod
    def wd_half(ks, j, e):
        f = ks * 5 + j
        return f'a[{4*f+2*e}:{4*f+2*e+1}]' if f < 64 else f'v[{232+4*(f-64)+2*e}:{233+4*(f-64)+2*e}]'
    def wd_addr(self):
        a = self.a
        for y in range(5):
            a(f'''
            v_add_u32 v70, {64*y}, v0
            v_mul_u32_u24 v14, 6554, v70
            v_lshrrev_b32 v14, 16, v14
            v_mul_u32_u24 v69, 10, v14
            v_sub_u32 v70, v70, v69
            v_mul_u32_u24 v14, 1280, v14
            v_lshl_add_u32 v{64+y}, v70, 4, v14
            ''')
        a(f'''
        v_lshrrev_b32 v70, 5, v0
        v_bfe_u32 v14, v0, 4, 1
        v_lshlrev_b32 v70, 2, v70
        v_add_u32 v70, v70, v14
        v_bfe_u32 v14, v0, 2, 2
        v_lshl_add_u32 v70, v70, 2, v14
        v_mul_u32_u24 v70, 160, v70
        v_and_b32 v14, 3, v0
        v_lshl_add_u32 v70, v14, 3, v70
        s_mul_i32 {t5}, {W}, 20480
        s_add_u32 {t5}, {t5}, {L_WD}
        v_add_u32 v69, {t5}, v70
        ''')
    def wd_issue(self, nks):
        a = self.a
        a(f's_mov_b32 m0, {t5}')
        for i in range(nks):
            for y in range(5):
                a(f'buffer_load_dwordx4 v{64+y}, {WD_}, {sWDo} offen lds\ns_add_u32 m0, m0, 1024')
            a(f's_add_u32 {sWDo}, {sWDo}, {32*1280}')
    def wd_subs(self):
        a = self.a
        bt = [4, 4, 4, 2]
        a('WD_I0:')
        a(f'''
        s_mul_i32 {sWDo}, {W}, {448*1280}
        s_mul_i32 {t0}, {S}, 160
        s_add_u32 {sWDo}, {sWDo}, {t0}
        ''')
        self.wd_addr(); self.wd_issue(4)
        a(f's_setpc_b64 {RET2}')
        for k in range(4):
            a(f'WD_C{k}:')
            self.wd_addr()
            a('s_waitcnt vmcnt(0)')
            for i in range(bt[k]):
                for j in range(5):
                    for e in range(2):
                        a(f'ds_read_b64_tr_b16 {self.wd_half(4*k+i, j, e)}, v69 offset:{5120*i + 32*j + 1280*e}')
            a('s_waitcnt lgkmcnt(0)')
            if k < 3: self.wd_issue(bt[k+1])
            a(f's_setpc_b64 {RET2}')

    def hbuild(self):
        a = self.a
        a(f'''
        s_mul_i32 {t0}, {W}, {L_CW}
        s_add_u32 {t1}, {t0}, 4080
        v_sub_u32 v38, {t1}, v1
        v_subrev_u32 v38, 3072, v38
        s_mov_b32 {t2}, 0xffff
        v_mov_b32 v16, 0
        v_mov_b32 v17, 0
        v_mov_b32 v18, 0
        v_mov_b32 v19, 0
        v_lshrrev_b32 v39, 1, v1
        s_add_u32 {t1}, {t0}, {L_U}
        v_add_u32 v39, {t1}, v39
        ds_write_b64 v39, v[16:17]
        v_bfe_u32 v39, v0, 1, 2
        v_mul_u32_u24 v39, 4160, v39
        v_and_b32 v36, 1, v0
        v_lshl_add_u32 v39, v36, 4, v39
        s_add_u32 {t1}, {t0}, 4096
        v_add_u32 v39, {t1}, v39
        ds_write_b128 v39, v[16:19]
        ''')
        for y in range(4):
            D = lambda k: f'v{42+6*y+k}'
            for s_ in range(4):
                r = 16 + 4 * s_
                for o in range(4):
                    if s_ == 0: a(f'v_alignbit_b32 v{r+o}, {D(3-o)}, {D(3-o)}, 16')
                    if s_ == 1: a(f'v_bfi_b32 v{r+o}, {t2}, {D(3-o)}, {D(2-o)}')
                    if s_ == 2: a(f'v_alignbit_b32 v{r+o}, {D(2-o)}, {D(2-o)}, 16')
                    if s_ == 3: a(f'v_bfi_b32 v{r+o}, {t2}, {D(2-o)}, {D(1-o)}')
                a(f'ds_write_b128 v38, v[{r}:{r+3}] offset:{4160*s_ + 3072 - 1024*y}')
        a(f'''
        v_and_b32 v16, 15, v0              ; m / n
        v_lshrrev_b32 v17, 4, v0           ; q
        v_lshrrev_b32 v18, 3, v16
        v_add_u32 v18, 2, v18
        v_cmp_eq_u32 vcc, v17, v18
        v_and_b32 v19, 1, v0
        v_lshlrev_b32 v19, 4, v19
        v_lshlrev_b32 v37, v19, v37
        v_cndmask_b32 v37, 0, v37, vcc
        v_bfe_u32 v19, v0, 1, 2
        ''')
        for d in range(4):
            a(f'v_cmp_eq_u32 vcc, {d}, v19\ns_nop 1\nv_cndmask_b32 v{32+d}, 0, v37, vcc')
        a(f'''
        v_sub_u32 v18, 3, v16
        v_and_b32 v18, 3, v18
        v_mul_u32_u24 v18, 4160, v18
        v_lshl_add_u32 v18, v17, 4, v18
        v_lshrrev_b32 v19, 2, v16
        v_lshlrev_b32 v19, 3, v19
        v_sub_u32 v18, v18, v19
        s_add_u32 {t1}, {t0}, 24
        v_add_u32 v36, {t1}, v18
        v_lshlrev_b32 v18, 5, v16
        v_lshl_add_u32 v18, v17, 4, v18
        s_add_u32 {t1}, {t0}, {L_U + 32}
        v_add_u32 v39, {t1}, v18
        s_lshl_b32 {t1}, {W}, 2
        v_add_u32 v18, {t1}, v17
        v_xor_b32 v18, v18, v16
        v_lshlrev_b32 v18, 3, v18
        v_lshl_add_u32 v18, v16, 7, v18
        v_add_u32 v66, {L_X}, v18
        v_bfe_u32 v18, v0, 1, 1
        v_lshl_add_u32 v18, v17, 1, v18
        s_lshl_b32 {t1}, {W}, 3
        v_add_u32 v18, {t1}, v18
        v_bfe_u32 v19, v0, 2, 2
        v_and_b32 v20, 1, v0
        v_lshl_add_u32 v19, v19, 2, v20
        v_and_b32 v20, 15, v18
        v_xor_b32 v19, v19, v20
        v_lshlrev_b32 v19, 3, v19
        v_lshl_add_u32 v19, v18, 7, v19
        v_add_u32 v67, {L_X}, v19
        v_xor_b32 v69, 16, v67
        v_lshrrev_b32 v18, 3, v0
        v_mul_u32_u24 v18, 20480, v18
        v_and_b32 v19, 7, v0
        v_lshl_add_u32 v68, v19, 4, v18
        v_and_b32 v70, 31, v0
        v_lshlrev_b32 v70, 7, v70
        s_waitcnt lgkmcnt(0)
        ''')
        for b in range(32):
            a(f'ds_read_b64 a[{4*b}:{4*b+1}], v36 offset:{64*(63-b)}')
            a(f'ds_read_b64 a[{4*b+2}:{4*b+3}], v36 offset:{64*(63-b)+8}')

    def conv(self):
        a = self.a
        a(f'''
        s_mul_i32 {t0}, {II}, 52
        s_lshr_b32 {t0}, {t0}, 8           ; i/5
        s_lshl_b32 {t1}, {X}, 2
        s_add_u32 {t0}, {t0}, {t1}
        s_lshl_b32 {t0}, {t0}, 12
        s_add_u32 {t0}, {t0}, {FP0}
        s_mul_i32 {t1}, {X}, 20
        s_add_u32 {t1}, {t1}, {II}         ; cw
        s_lshl_b32 {t2}, {t1}, 2
        s_add_u32 {t2}, {t2}, {W}
        s_lshl_b32 {t2}, {t2}, 12
        s_add_u32 {t2}, {t2}, {UT}
        s_mul_i32 {t3}, {W}, {L_CW}
        s_add_u32 m0, {t3}, {L_U + 512}
        s_mul_i32 {t3}, {W}, 1280
        s_add_u32 {t3}, {t3}, {t1}
        s_lshl_b32 {t3}, {t3}, 7
        s_add_u32 {sO1}, {t3}, {YB}
        s_mul_i32 {t3}, {W}, 160
        s_add_u32 {t3}, {t3}, {t1}
        s_lshl_b32 {t3}, {t3}, 7
        s_add_u32 {sO2}, {t3}, {FY}
        ''')
        self.poll('v70', t0)
        self.stamp(4)
        for y in range(4):
            a(f'buffer_load_dwordx4 v1, {WS_}, {t2} offen offset:{1024*y} sc1 lds')
        a('s_waitcnt vmcnt(0)')
        self.stamp(5)
        ds = DS(a)
        Areg = {b: f'a[{4*b}:{4*b+3}]' for b in range(32)}
        Breg = {e: f'a[{128+4*(e+7)}:{131+4*(e+7)}]' for e in range(-7, 25)}
        def rng(r):
            m = re.fullmatch(r'([av])\[(\d+):(\d+)\]', r); return m.group(1), int(m.group(2))
        def ldA(b):
            k, r = rng(Areg[b])
            return [(f'ds_read_b64 {k}[{r}:{r+1}], v36 offset:{64*(63-b)}', None),
                    (f'ds_read_b64 {k}[{r+2}:{r+3}], v36 offset:{64*(63-b)+8}', ('A', b))]
        def ldB(e): return [(f'ds_read_b128 {Breg[e]}, v39 offset:{64*(e+7)}', ('B', e))]
        for b in range(32): ds.done.add(('A', b))
        acc = {0: 16, 1: 20, 2: 24, 3: 28, 4: 16, 5: 20, 6: 48, 7: 52}
        def mf(j, b, e):
            if b is not None: ds.need(('A', b))
            ds.need(('B', e))
            c = f'v[{acc[j]}:{acc[j]+3}]'
            if b is None: a(f'v_mfma_f32_16x16x32_bf16 {c}, v[32:35], {Breg[e]}, 0')
            else: a(f'v_mfma_f32_16x16x32_bf16 {c}, {Areg[b]}, {Breg[e]}, {c}')
        def run(mfs, fill, per=1):
            fill = list(fill)
            for m_ in mfs:
                mf(*m_)
                for _ in range(per):
                    if fill: fill.pop(0)()
            while fill: fill.pop(0)()
        L = lambda items: [(lambda it=it: ds.op(*it)) for it in items]
        nop = lambda: None
        def epi(c, tiles, tmp):
            F = []
            buf = (c & 1) * 4096
            for jj, j in enumerate(tiles):
                r = acc[j]
                F.append(lambda r=r, jj=jj: a(f'v_cvt_pk_bf16_f32 v{tmp+2*jj}, v{r}, v{r+1}\nv_cvt_pk_bf16_f32 v{tmp+2*jj+1}, v{r+2}, v{r+3}'))
                F.append(lambda jj=jj: ds.op(f'ds_write_b64 v66, v[{tmp+2*jj}:{tmp+2*jj+1}] offset:{buf + 2048*jj}', ('W', c, jj)))
            return F
        def epi2(c, tmp):
            buf = (c & 1) * 4096
            F = [lambda: ds.op(f'ds_read_b64_tr_b16 v[{tmp}:{tmp+1}], v67 offset:{buf}', None),
                 lambda: ds.op(f'ds_read_b64_tr_b16 v[{tmp+2}:{tmp+3}], v69 offset:{buf}', ('R', c))]
            return F
        def ystore(c, tmp):
            def f():
                ds.need(('R', c))
                a(f'buffer_store_dwordx4 v[{tmp}:{tmp+3}], v68, {WS_}, {sO1} offen sc1\ns_add_u32 {sO1}, {sO1}, {32*20480}')
            return f
        def bar(tag):
            def f():
                ds.need(tag); a('s_barrier')
            return f
        def yflag(n):
            def f():
                a(f's_waitcnt vmcnt({n})'); self.flag(sO2); a(f's_add_u32 {sO2}, {sO2}, {640*128}')
            return f
        def w1i(n):
            F = [lambda: a(f's_lshl_b32 {t0}, {W}, 10\ns_add_u32 m0, {t0}, {L_W1}')]
            for i in range(n):
                F.append(lambda: a(f'buffer_load_dwordx4 v64, {W1_}, {sW1o} offen lds\ns_add_u32 m0, m0, 4096\ns_add_u32 {sW1o}, {sW1o}, {16*3456}'))
            return F
        def w1c(ks0, n):
            F = []
            for i in range(n):
                r = 72 + 4 * (ks0 + i)
                o = 4096 * ((ks0 + i) & 15)
                F += L([(f'ds_read_b64_tr_b16 v[{r}:{r+1}], v65 offset:{o}', None),
                        (f'ds_read_b64_tr_b16 v[{r+2}:{r+3}], v65 offset:{o+512}', ('W1', ks0 + i))])
            return F
        l0 = []
        for r in range(8): l0 += ldB(-r) + ldB(8 - r)
        l1 = []
        for r in range(8): l1 += ldB(16 - r) + ldB(24 - r)
        for it in l0[:4]: ds.op(*it)
        m0_ = [(0, None, 0), (1, None, 8)]
        for r in range(8): m0_ += [(0, r, -r), (1, r, 8 - r), (1, 8 + r, -r)]
        run(m0_, L(l0[4:] + l1))
        self.stamp(6)
        slots = [f'v[{200+4*k}:{203+4*k}]' for k in range(8)]
        def extras(r, sl):
            it = []
            for k in range(4):
                Areg[8*(4+k) + r] = sl[k]; Breg[8*(4+k) - r] = sl[4+k]
            for k in range(4): it += ldB(8*(4+k) - r) + ldA(8*(4+k) + r)
            return it
        m1 = [(2, None, 16), (3, None, 24)]
        for r in range(8):
            for j in (2, 3):
                for be in range(j + 1): m1.append((j, 8*be + r, 8*(j-be) - r))
        F = [nop, nop] + epi(0, (0, 1), 56) + [nop, nop, bar(('W', 0, 1))] + epi2(0, 60) + [nop]*4 + [ystore(0, 60)]
        F += w1i(16) + L(extras(0, slots)) + [nop] * 14 + [yflag(16)]
        run(m1, F)
        self.stamp(7)
        slots1 = [f'v[{232+4*k}:{235+4*k}]' for k in range(6)] + ['v[40:43]', 'v[44:47]']
        for r in range(8):
            mm = []
            prs = [(be, ga) for be in range(8) for ga in range(8) if 4 <= be + ga <= 7]
            prs.sort(key=lambda p: max(p))
            if r == 0:
                mm += [(j, None, 8*j) for j in (4, 5, 6, 7)]
            mm += [(be + ga, 8*be + r, 8*ga - r) for be, ga in prs]
            F = []
            if r == 0: F += [nop, nop] + epi(1, (2, 3), 56) + [nop, nop, bar(('W', 1, 1))] + epi2(1, 60) + [nop]*3 + [ystore(1, 60)]
            if r < 7:
                if r == 0: sl = slots1
                else:
                    p = r - 1
                    sl = [Areg[8*k + p] for k in range(4)] + [Breg[8*k - p] for k in range(4)]
                F += L(extras(r + 1, sl))
            if r == 2: F += [yflag(0), lambda: a('s_barrier')] + w1c(16, 6)
            if r == 3: F += w1c(22, 7)
            if r == 4: F += w1c(29, 3) + [bar(('W1', 31))] + w1i(8)[:7]
            if r == 5: F += w1i(8)[7:]
            run(mm, F)
        self.stamp(8)
        for f in epi(2, (4, 5), 56) + epi(3, (6, 7), 60): f()
        bar(('W', 3, 1))()
        for f in epi2(2, 56) + epi2(3, 60) + [ystore(2, 56), ystore(3, 60)]: f()
        a('s_waitcnt vmcnt(2)\ns_barrier')
        for f in w1c(32, 8): f()
        yflag(1)(); yflag(1)()
        a('s_waitcnt lgkmcnt(0)\ns_barrier')
        self.stamp(9)

    def ln_setup(self):
        a = self.a
        a(f'''
        s_lshl_b32 {t0}, {X}, 2
        s_add_u32 {G}, {t0}, {II}
        s_sub_u32 {G}, {G}, 28             ; TL
        v_and_b32 v16, 3, v0
        s_lshl_b32 {t0}, {W}, 2
        v_add_u32 v16, {t0}, v16
        v_lshrrev_b32 v17, 2, v0           ; kappa
        v_mul_u32_u24 v18, 160, v16
        ''')
        for u in range(5):
            a(f'''
            v_add_u32 v19, {16*u}, v17
            v_mul_u32_u24 v20, 205, v19
            v_lshrrev_b32 v20, 11, v20
            v_mul_u32_u24 v20, {2560-160}, v20
            v_lshl_add_u32 v20, v19, 4, v20
            v_add_u32 v{172+u}, v20, v18
            ''')
        a(f'''
        v_mul_u32_u24 v18, 1280, v16
        v_lshl_add_u32 v177, v17, 4, v18
        v_and_b32 v18, 7, v16
        v_lshlrev_b32 v18, 4, v18
        v_lshl_add_u32 v18, v17, 8, v18
        v_lshrrev_b32 v19, 3, v16
        v_lshl_add_u32 v178, v19, 3, v18
        v_min_u32 v18, 39, v0
        s_mul_i32 {t0}, {W}, 40
        v_add_u32 v18, {t0}, v18
        v_lshlrev_b32 v179, 7, v18
        v_and_b32 v18, 7, v0
        s_lshl_b32 {t0}, {W}, 3
        v_add_u32 v18, {t0}, v18
        v_lshlrev_b32 v180, 7, v18
        ''')
    def red(self, r):
        self.a(f'''
        v_add_f32_dpp v{r}, v{r}, v{r} row_ror:4 row_mask:0xf bank_mask:0xf
        v_add_f32_dpp v{r}, v{r}, v{r} row_ror:8 row_mask:0xf bank_mask:0xf
        v_mov_b32 v{r+1}, v{r}
        v_permlane16_swap_b32 v{r}, v{r+1}
        v_add_f32 v{r}, v{r}, v{r+1}
        v_mov_b32 v{r+1}, v{r}
        v_permlane32_swap_b32 v{r}, v{r+1}
        v_add_f32 v{r}, v{r}, v{r+1}
        ''')
    def ln_subs(self):
        a = self.a
        P = lambda k: f'v[{72+2*k}:{73+2*k}]'
        a('LN_ST:')
        a(f'v_pk_add_f32 v[182:183], {P(0)}, {P(1)}\nv_pk_add_f32 v[184:185], {P(2)}, {P(3)}')
        for k in range(4, 20):
            r = 182 + 2 * (k & 1)
            a(f'v_pk_add_f32 v[{r}:{r+1}], v[{r}:{r+1}], {P(k)}')
        a('v_pk_add_f32 v[182:183], v[182:183], v[184:185]\nv_add_f32 v182, v182, v183')
        self.red(182)
        a(f'v_mul_f32 v182, {hex(f2u(1/640))}, v182')
        for k in range(20):
            a(f'v_pk_add_f32 {P(k)}, {P(k)}, v[182:183] op_sel_hi:[1,0] neg_lo:[0,1] neg_hi:[0,1]')
            if k >= 1:
                j = k - 1; r = 184 + 2 * (j & 1)
                if j < 2: a(f'v_pk_mul_f32 v[{r}:{r+1}], {P(j)}, {P(j)}')
                else: a(f'v_pk_fma_f32 v[{r}:{r+1}], {P(j)}, {P(j)}, v[{r}:{r+1}]')
        a(f'''
        v_pk_fma_f32 v[186:187], {P(19)}, {P(19)}, v[186:187]
        v_pk_add_f32 v[184:185], v[184:185], v[186:187]
        v_add_f32 v184, v184, v185
        ''')
        self.red(184)
        a(f'''
        v_mov_b32 v185, {hex(f2u(1e-5))}
        v_fmac_f32 v185, {hex(f2u(1/640))}, v184
        v_rsq_f32 v184, v185
        s_nop 0
        s_setpc_b64 {RET2}
        ''')
        a('LN_FIN:')
        for k in range(20):
            r = 188 + 2 * (k & 3)
            a(f'''
            v_lshlrev_b32 v{r}, 16, v{112+k}
            v_and_b32 v{r+1}, 0xffff0000, v{112+k}
            v_pk_fma_f32 v[{r}:{r+1}], v[{r}:{r+1}], v[184:185], 1.0 op_sel_hi:[1,0,0]
            v_pk_fma_f32 {P(k)}, {P(k)}, v[{r}:{r+1}], v[182:183] op_sel_hi:[1,1,0]
            ''')
        for k in range(20): a(f'v_cvt_pk_bf16_f32 v{132+k}, v{72+2*k}, v{73+2*k}')
        a(f's_call_b64 {RET2}, LN_ST')
        for k in range(20):
            a(f'v_pk_mul_f32 {P(k)}, {P(k)}, v[184:185] op_sel_hi:[1,0]')
            if k: a(f'v_cvt_pk_bf16_f32 v{152+k-1}, v{72+2*k-2}, v{73+2*k-2}')
            if k % 4 == 1 and k > 4:
                u = k // 4 - 1
                a(f'buffer_store_dwordx4 v[{152+4*u}:{155+4*u}], v177, {WS_}, {sO2} offen offset:{256*u} sc1')
        a(f'''
        v_cvt_pk_bf16_f32 v171, v110, v111
        buffer_store_dwordx4 v[168:171], v177, {WS_}, {sO2} offen offset:1024 sc1
        ''')
        for u in range(5):
            a(f'buffer_store_dwordx4 v[{132+4*u}:{135+4*u}], v{172+u}, {WS_}, {sO1} offen sc1')
        self.stampn(42)
        a('s_waitcnt vmcnt(0)')
        self.flag(sFH)
        a(f's_setpc_b64 {RET}')
    def ln_unpack(self, src):
        for k in range(20):
            self.a(f'v_lshlrev_b32 v{72+2*k}, 16, v{src+k}\nv_and_b32 v{73+2*k}, 0xffff0000, v{src+k}')
    def ln_yload(self):
        a = self.a
        for u in range(5):
            for h in range(2):
                a(f'buffer_load_dwordx2 v[{112+4*u+2*h}:{113+4*u+2*h}], v178, {WS_}, {t2} offen offset:{128*h} sc1')
            if u < 4: a(f's_add_u32 {t2}, {t2}, 4096')
    def ln_offs(self, layer):
        self.a(f'''
        s_lshl_b32 {t1}, {N}, 5
        s_add_u32 {t1}, {t1}, {G}
        s_mul_i32 {t0}, {t1}, 20480
        s_add_u32 {sO1}, {t0}, {XB + layer*SZ}
        s_add_u32 {sO2}, {t0}, {AB + layer*SZ}
        s_add_u32 {t2}, {t0}, {YB}
        s_lshl_b32 {t3}, {t1}, 2
        s_add_u32 {t3}, {t3}, {W}
        s_lshl_b32 {t3}, {t3}, 7
        s_add_u32 {sFH}, {t3}, {FA + layer*4*128*128}
        ''')
    def ln1(self):
        a = self.a
        self.ln_offs(0)
        for u in range(5): a(f'buffer_load_dwordx4 v[{132+4*u}:{135+4*u}], v177, {Q_}, {t0} offen offset:{256*u}')
        a(f'''
        s_lshl_b32 {t3}, {N}, 2
        s_lshr_b32 {t4}, {G}, 3
        s_add_u32 {t3}, {t3}, {t4}
        s_mul_i32 {t3}, {t3}, {160*128}
        s_add_u32 {t3}, {t3}, {FY}
        s_waitcnt vmcnt(0)
        ''')
        self.stampn(30)
        self.ln_unpack(132)
        a(f's_call_b64 {RET2}, LN_ST')
        self.stampn(34)
        self.poll('v179', t3)
        a('s_barrier')
        self.stampn(10)
        self.ln_yload()
        a(f's_waitcnt vmcnt(0)')
        self.stampn(38)
        a(f's_call_b64 {RET}, LN_FIN')
        self.stampn(14)
    def ln2(self):
        a = self.a
        self.ln_offs(1)
        a(f's_add_u32 {t4}, {t0}, {XB}')
        for u in range(5): a(f'buffer_load_dwordx4 v[{132+4*u}:{135+4*u}], v{172+u}, {WS_}, {t4} offen sc1')
        self.ln_yload()
        a(f'''
        s_lshl_b32 {t3}, {t1}, 12
        s_add_u32 {t3}, {t3}, {FF}
        s_add_u32 {t4}, {t0}, {FB}
        s_waitcnt vmcnt(10)
        ''')
        self.ln_unpack(132)
        self.poll('v180', t3)
        self.stampn(18)
        for u in range(5): a(f'buffer_load_dwordx4 v[{152+4*u}:{155+4*u}], v{172+u}, {WS_}, {t4} offen sc1')
        for k in range(20):
            if k % 4 == 0: a(f's_waitcnt vmcnt({4 - k//4})')
            r = 188 + 2 * (k & 3)
            a(f'''
            v_lshlrev_b32 v{r}, 16, v{152+k}
            v_and_b32 v{r+1}, 0xffff0000, v{152+k}
            v_pk_add_f32 v[{72+2*k}:{73+2*k}], v[{72+2*k}:{73+2*k}], v[{r}:{r+1}]
            ''')
        a(f's_call_b64 {RET2}, LN_ST\ns_call_b64 {RET}, LN_FIN')
        self.stampn(22)

    def gelu_ops(self, acc):
        c1, c2 = -2.0*0.7978845608028654*1.4426950408889634, -2.0*0.7978845608028654*1.4426950408889634*0.044715
        O = []
        for p in range(4):
            g = acc + 2 * p; u = g + 8
            O += [f'v_pk_mul_f32 v[68:69], v[{g}:{g+1}], v[{g}:{g+1}]',
                  f'v_pk_mul_f32 v[{u}:{u+1}], v[{g}:{g+1}], v[{u}:{u+1}]',
                  f'v_pk_fma_f32 v[68:69], v[68:69], s[100:101], v[70:71] op_sel_hi:[1,0,0]',
                  f'v_pk_mul_f32 v[{g}:{g+1}], v[{g}:{g+1}], v[68:69]',
                  f'v_exp_f32 v{g}, v{g}', f'v_exp_f32 v{g+1}, v{g+1}',
                  f'v_pk_add_f32 v[{g}:{g+1}], v[{g}:{g+1}], 1.0 op_sel_hi:[1,0]',
                  f'v_rcp_f32 v{g}, v{g}', f'v_rcp_f32 v{g+1}, v{g+1}',
                  f'v_pk_mul_f32 v[{u}:{u+1}], v[{u}:{u+1}], v[{g}:{g+1}]',
                  f'v_cvt_pk_bf16_f32 v{64+p}, v{u}, v{u+1}']
        return O
    def a_dma(self, slot, soff, srd=WS_):
        O = [f's_add_u32 m0, {sMA}, {slot}']
        for cb in range(10):
            O.append(f'buffer_load_dwordx4 v6, {srd}, {soff} offen offset:{128*cb} sc1 lds' + ('\ns_add_u32 m0, m0, 896' if cb < 9 else ''))
        return O
    def h_dma(self, soff, srd=WS_):
        O = [f's_mov_b32 m0, {sMH}']
        for k in range(14):
            s_ = f'buffer_load_dwordx4 v1, {srd}, {soff} offen offset:{1024*(k&3)} sc1 lds'
            if k & 3 == 3: s_ += f'\ns_add_u32 m0, m0, 4096\ns_add_u32 {soff}, {soff}, 4096'
            O.append(s_)
        return O
    def q_unit(self, slot, acc, fill):
        a = self.a; ds = DS(a)
        rd = lambda ks: ds.op(f'ds_read_b128 v[{48+4*(ks&3)}:{51+4*(ks&3)}], v{2+(ks&3)} offset:{slot + 1024*(ks>>2)}', ks)
        for ks in range(3): rd(ks)
        fill = list(fill); nf = len(fill); k = 0
        for ks in range(40):
            ds.need(ks)
            c = f'v[{acc}:{acc+15}]'
            a(f'v_mfma_f32_32x32x16_bf16 {c}, v[{72+4*ks}:{75+4*ks}], v[{48+4*(ks&3)}:{51+4*(ks&3)}], {c if ks else 0}')
            if ks + 3 < 40: rd(ks + 3)
            while k < nf and (ks >= 1) and k < (ks * nf + 36) // 37: a(fill[k]); k += 1
        while k < nf: a(fill[k]); k += 1
    def q_simple(self):
        a = self.a
        a(f'''
        s_lshl_b32 {t0}, {N}, 14
        s_add_u32 {sPA}, {t0}, {FA}
        s_lshl_b32 {t0}, {N}, 3
        s_add_u32 {t0}, {t0}, {G}          ; n*8+g
        s_mul_i32 {t1}, {t0}, {64*1280}
        s_add_u32 {sAD}, {t1}, {AB}
        s_add_u32 {sQB}, {sAD}, {32*1280}
        s_mul_i32 {t1}, {t0}, {4*HST}
        s_lshl_b32 {t2}, {FS}, 2
        s_add_u32 {t2}, {t2}, {W}
        s_lshl_b32 {t3}, {t2}, 9
        s_add_u32 {t1}, {t1}, {t3}
        s_add_u32 {sQH}, {t1}, {HB}
        s_mul_i32 {t0}, {t0}, 112
        s_add_u32 {t0}, {t0}, {t2}
        s_lshl_b32 {t0}, {t0}, 7
        s_add_u32 {sFH}, {t0}, {FH}
        ''')
        self.poll('v10', sPA)
        self.stampn(10)
        for o in self.a_dma(L_A, sAD) + self.a_dma(L_B, sQB): a(o)
        a('s_waitcnt vmcnt(10)\ns_barrier')
        self.stampn(34)
        self.q_unit(L_A, 16, [])
        a('s_waitcnt vmcnt(0)\ns_barrier')
        self.q_unit(L_B, 32, self.gelu_ops(16) + [f'buffer_store_dwordx4 v[64:67], v8, {WS_}, {sQH} offen sc1', f's_add_u32 {sQH}, {sQH}, {2*HST}'])
        for o in self.gelu_ops(32): a(o)
        a(f'buffer_store_dwordx4 v[64:67], v8, {WS_}, {sQH} offen sc1')
        self.stampn(42)
        a('s_barrier\ns_waitcnt vmcnt(0)')
        self.flag(sFH)
        self.stampn(18)
    def g_sub(self):
        a = self.a
        a('G_SUB:')
        a(f'''
        s_lshl_b32 {t0}, {sXH}, 3
        s_add_u32 {t0}, {t0}, {X}
        s_mul_i32 {t0}, {t0}, 112
        s_mul_i32 {t1}, {W}, 28
        s_add_u32 {t0}, {t0}, {t1}
        s_lshl_b32 {t0}, {t0}, 7
        s_add_u32 {sPH}, {t0}, {FH}
        s_lshl_b32 {t0}, {sXH}, 5
        s_add_u32 {t0}, {t0}, {T}          ; m*32+T
        s_mul_i32 {t1}, {t0}, {HST}
        s_mul_i32 {t2}, {W}, 14336
        s_add_u32 {t1}, {t1}, {t2}
        s_add_u32 {sHD}, {t1}, {HB}
        s_and_b32 {t0}, {t0}, 127          ; c*32+T
        s_lshl_b32 {t1}, {t0}, 3
        s_add_u32 {t1}, {t1}, {S}
        s_mul_i32 {t1}, {t1}, 2560
        s_mul_i32 {t2}, {W}, 640
        s_add_u32 {t1}, {t1}, {t2}
        s_add_u32 {sO1}, {t1}, {FB}
        s_add_u32 {sXA}, {t1}, {XB + SZ}
        s_mul_i32 {t1}, {t0}, 20480
        s_mul_i32 {t2}, {S}, 160
        s_add_u32 {sO2}, {t1}, {t2}
        s_lshl_b32 {t1}, {t0}, 2
        s_add_u32 {t1}, {t1}, {W}
        s_lshl_b32 {t1}, {t1}, 3
        s_add_u32 {t1}, {t1}, {S}
        s_lshl_b32 {t1}, {t1}, 7
        s_add_u32 {sPF}, {t1}, {FF}
        ''')
        self.stamp(50)
        self.poll('v9', sPH)
        self.stamp(51)
        for o in self.h_dma(sHD): a(o)
        a(f'''
        buffer_load_dwordx4 v[60:63], v1, {WS_}, {sXA} offen sc1
        s_waitcnt vmcnt(1)
        ''')
        self.stamp(52)
        ds = DS(a)
        rd = lambda ks: ds.op(f'ds_read_b128 v[{48+4*(ks%3)}:{51+4*(ks%3)}], v7 offset:{1024*ks}', ks)
        rd(0); rd(1)
        for ks in range(14):
            if ks == 12: a(f's_cmp_eq_u32 {W}, 3\ns_cbranch_scc1 G_RED')
            ds.need(ks)
            for j in range(5):
                c = f'v[{16+4*j}:{19+4*j}]'
                a(f'v_mfma_f32_16x16x32_bf16 {c}, {self.wd_reg(ks, j)}, v[{48+4*(ks%3)}:{51+4*(ks%3)}], {c if ks else 0}')
                if j == 0 and ks + 2 < 14: rd(ks + 2)
        a('G_RED:\ns_nop 7')
        self.stamp(53)
        a('s_barrier')
        for j in range(5): a(f'ds_write_b128 v11, v[{16+4*j}:{19+4*j}] offset:{64*j}')
        a('s_waitcnt lgkmcnt(0)\ns_barrier')
        for p in range(4):
            a(f'ds_read_b128 v[{16+8*p}:{19+8*p}], v12 offset:{5376*p}\nds_read_b128 v[{20+8*p}:{23+8*p}], v12 offset:{5376*p+16}')
        a('s_waitcnt lgkmcnt(4)')
        for k in range(4): a(f'v_pk_add_f32 v[{16+2*k}:{17+2*k}], v[{16+2*k}:{17+2*k}], v[{24+2*k}:{25+2*k}]')
        a('s_waitcnt lgkmcnt(0)')
        for k in range(4): a(f'v_pk_add_f32 v[{32+2*k}:{33+2*k}], v[{32+2*k}:{33+2*k}], v[{40+2*k}:{41+2*k}]')
        for k in range(4): a(f'v_pk_add_f32 v[{16+2*k}:{17+2*k}], v[{16+2*k}:{17+2*k}], v[{32+2*k}:{33+2*k}]')
        self.stamp(54)
        a(f'''
        s_mov_b32 exec_hi, 0xff
        s_cmp_ge_u32 {sXH}, 4
        s_cbranch_scc1 G_OUT
        ''')
        for k in range(4): a(f'v_cvt_pk_bf16_f32 v{64+k}, v{16+2*k}, v{17+2*k}')
        a(f'''
        buffer_store_dwordx4 v[64:67], v1, {WS_}, {sO1} offen sc1
        s_waitcnt vmcnt(0)
        ''')
        self.flag(sPF)
        a(f's_setpc_b64 {RET}\nG_OUT:\ns_waitcnt vmcnt(0)')
        for k in range(4):
            a(f'''
            v_lshlrev_b32 v32, 16, v{60+k}
            v_and_b32 v33, 0xffff0000, v{60+k}
            v_pk_add_f32 v[{16+2*k}:{17+2*k}], v[{16+2*k}:{17+2*k}], v[32:33]
            v_cvt_pk_bf16_f32 v{64+k}, v{16+2*k}, v{17+2*k}
            ''')
        a(f'''
        buffer_store_dwordx4 v[64:67], v13, {OUT_}, {sO2} offen
        s_mov_b32 exec_hi, -1
        s_setpc_b64 {RET}
        ''')

    def wd_all(self):
        for l in ('WD_I0', 'WD_C0', 'WD_C1', 'WD_C2', 'WD_C3'): self.a(f's_call_b64 {RET2}, {l}')
        self.a('s_barrier')
    def main(self):
        a = self.a
        self.prologue()
        if self.stop == 'start': a('s_waitcnt vmcnt(0)\ns_branch DONE')
        self.p0()
        self.stamp(56)
        a(f'''
        s_bitcmp1_b32 {ROLE}, 0
        s_cbranch_scc1 R_G1
        s_waitcnt vmcnt(0)
        ''')
        self.flag(t4)
        self.stamp(2)
        a('s_barrier')
        a(f'''
        s_bitcmp1_b32 {ROLE}, 2
        s_cbranch_scc1 R_LN
        ''')
        self.wd_all()
        a(f'''
        s_mov_b32 {sXH}, 0
        G2_LOOP:
        s_call_b64 {RET}, G_SUB
        s_add_u32 {sXH}, {sXH}, 1
        s_cmp_lt_u32 {sXH}, 8
        s_cbranch_scc1 G2_LOOP
        s_branch DONE
        ''')
        a('R_LN:')
        self.ln_setup()
        self.wd_all()
        self.stamp(3)
        a(f's_mov_b32 {N}, 0\nLN1_LOOP:')
        self.ln1()
        a(f'''
        s_add_u32 {N}, {N}, 1
        s_cmp_lt_u32 {N}, 4
        s_cbranch_scc1 LN1_LOOP
        s_mov_b32 {sXH}, 0
        LN2_LOOP:
        s_call_b64 {RET}, G_SUB
        s_sub_u32 {N}, {sXH}, 1
        s_add_u32 {sXH}, {sXH}, 1
        s_cmp_ge_u32 {N}, 4
        s_cbranch_scc1 LN2_SKIP
        ''')
        self.ln2()
        a(f'''
        LN2_SKIP:
        s_cmp_lt_u32 {sXH}, 8
        s_cbranch_scc1 LN2_LOOP
        s_branch DONE
        ''')
        a('R_G1:')
        self.w1_setup()
        self.w1_issue(16)
        a(f'''
        s_bitcmp1_b32 {ROLE}, 1
        s_cbranch_scc1 R_CONV
        s_waitcnt vmcnt(16)
        ''')
        self.flag(t4)
        self.stamp(2)
        self.w1_consume(0, 16); self.w1_issue(16); self.w1_consume(16, 16); self.w1_issue(8); self.w1_consume(32, 8)
        a('s_branch G1_MAIN\nR_CONV:\ns_waitcnt vmcnt(16)')
        self.flag(t4)
        self.stamp(2)
        self.hbuild()
        self.stamp(57)
        self.w1_consume(0, 16)
        self.stamp(3)
        self.conv()
        a('G1_MAIN:')
        self.wd_all()
        a(f's_mov_b32 {sC2}, {hex(f2u(-2.0*0.7978845608028654*1.4426950408889634*0.044715))}')
        a(f's_mov_b32 s101, {sC2}')
        a(f'v_mov_b32 v70, {hex(f2u(-2.0*0.7978845608028654*1.4426950408889634))}')
        a(f's_mov_b32 {N}, 0\nG1_LOOP:')
        self.q_simple()
        a(f'''
        s_sub_u32 {sXH}, {N}, 1
        s_cbranch_scc1 G1_NOG
        s_call_b64 {RET}, G_SUB
        G1_NOG:
        ''')
        self.stampn(26)
        a(f'''
        s_add_u32 {N}, {N}, 1
        s_cmp_lt_u32 {N}, 8
        s_cbranch_scc1 G1_LOOP
        s_mov_b32 {sXH}, 7
        s_call_b64 {RET}, G_SUB
        DONE:
        ''')
        self.stamp(62)
        if self.timers:
            a(f'''
            s_memrealtime {TM}
            s_waitcnt lgkmcnt(0)
            v_writelane_b32 v71, s96, 61
            s_lshl_b32 {t0}, s2, 2
            s_add_u32 {t0}, {t0}, {W}
            s_lshl_b32 {t0}, {t0}, 8
            s_add_u32 {t0}, {t0}, {TIM}
            v_lshlrev_b32 v16, 2, v0
            buffer_store_dword v71, v16, {WS_}, {t0} offen
            ''')
        if self.dbg and self.timers:
            a(f'''
            s_load_dwordx2 s[4:5], s[0:1], 88
            s_mov_b32 s6, 256
            s_cmp_eq_u32 s2, {self.dbg[0]}
            s_cbranch_scc0 NODBG
            s_cmp_eq_u32 {W}, 0
            s_cbranch_scc0 NODBG
            s_waitcnt lgkmcnt(0)
            ''')
            for i, l in enumerate(self.dbg[1]):
                a(f'v_readlane_b32 {t0}, v71, {l}\ns_nop 3\nv_writelane_b32 v16, {t0}, {i}')
            a('''
            v_lshlrev_b32 v17, 2, v0
            s_mov_b64 exec, 0xffff
            buffer_store_dword v16, v17, s[4:7], 0 offen
            s_mov_b64 exec, -1
            NODBG:
            ''')
        elif self.dbg:
            a(f'''
            s_memrealtime s[98:99]
            s_load_dwordx2 s[4:5], s[0:1], 88
            s_mov_b32 s6, 256
            s_waitcnt lgkmcnt(0)
            s_not_b32 s96, s96
            v_mov_b32 v16, s98
            v_mov_b32 v17, s96
            s_mov_b64 exec, 1
            buffer_atomic_umax v16, off, s[4:7], 0
            buffer_atomic_umax v17, off, s[4:7], 0 offset:4
            s_mov_b64 exec, -1
            ''')
        a(f'''
        s_or_b32 {t0}, s2, {W}
        s_cbranch_scc1 FIN
        ''')
        self.flag('0')
        a('''
        FIN:
        s_waitcnt vmcnt(0)
        EXIT:
        s_endpgm
        ''')
        self.g_sub(); self.ln_subs(); self.wd_subs()

def build(path, **kw):
    g = Gen(**kw); g.main()
    ref = open('interleave_layers__ssm_conv_h3__geglu_ffn__prompt.s.ref').read().split('\n')
    hdr = [l for l in ref if l.startswith(';') and '@launch' not in l]
    hdr = hdr[:14] + ['; @launch grid=(256,1,1) block=(256,1,1) lds=163840']
    txt = '\n'.join(hdr) + f'\n.amdgcn_target "amdgcn-amd-amdhsa--gfx950"\n.text\n.globl {KN}\n.p2align 8\n.type {KN},@function\n{KN}:\n'
    txt += g.a.text() + kern_desc(KN)
    open(path, 'w').write(txt)
    print(path, 'lines', txt.count('\n'), 'nops', g.a.nops)

if __name__ == '__main__':
    build('k_t.s', timers=True)
    build('k.s')
    build('k_d.s', timers=True, dbg=(8, [0,1,2,4,9,10,11,12,13,14,15,16,17,62,61,63]))
    build('k_e.s', timers=True, dbg=(224, [0,1,2,3,30,10,14,11,15,12,16,13,17,62,61,63]))
    build('k0_t.s', timers=True, stop_after='start')
```

```python
import sys, struct, re
from asm2 import *

def f2u(f): return struct.unpack('<I', struct.pack('<f', f))[0]

FP0 = 0x1000; FY = FP0 + 0x20000; FA = FY + 0x50000; FH = FA + 0x20000; FF = FH + 0xE0000
TIM = FF + 0x80000; DUMMY = TIM + 0x40000
UT = 0x300000; YB = 0x600000; AB = 0x900000; XB = 0xE00000; FB = 0x1300000; HB = 0x1600000
WS_SIZE = 0x2400000
SZ = 0x280000
HST = 57344
L_A = 0; L_B = 40960; L_H = 81920; L_R = 139264
L_CW = 21248; L_U = 16640; L_W1 = 84992; L_X = 153600; L_WD = 81920
K_, V_, SK_, H_, D_, Q_, WG_, WU_, WD_, OUT_, WS_ = [f's[{4*i+4}:{4*i+7}]' for i in range(11)]
TAG, W, X, II, T, S, G, FS = [f's{i}' for i in range(48, 56)]
WSB = 's[56:59]'; WSD = 's[60:63]'; W1_ = 's[64:67]'
N = 's68'; CNT = 's69'
sQB, sQH, sPF, sPH, sXH, sHD, sFH, sPA, sXA, sAD, sO1, sO2 = [f's{i}' for i in range(70, 82)]
sMA = 's82'
sMH = 's83'
sWDo = 's84'
sW1o = 's85'
t0, t1, t2, t3, t4, t5 = [f's{i}' for i in range(86, 92)]
RET = 's[92:93]'; RET2 = 's[94:95]'
TM = 's[96:97]'
ROLE = 's98'
sC2 = 's100'
LIMIT = 0x10000

class DS:
    def __init__(self, a): self.a = a; self.q = []; self.done = set()
    def op(self, txt, tag=None):
        self.a(txt); self.q.append(tag)
    def need(self, tag):
        if tag in self.done: return
        i = self.q.index(tag)
        n = len(self.q) - 1 - i
        k = min(n, 15)
        self.a(f's_waitcnt lgkmcnt({k})')
        cut = len(self.q) - k
        for t_ in self.q[:cut]: self.done.add(t_)
        self.q = self.q[cut:]

class Gen:
    def __init__(self, timers=False, stop_after=None, dbg=False):
        self.a = Asm(); self.timers = timers; self.stop = stop_after; self.dbg = dbg
        self.nst = 0
    def stamp(self, k):
        if not self.timers: return
        self.a(f'''
        s_memtime {TM}
        s_waitcnt lgkmcnt(0)
        v_writelane_b32 v71, s96, {k}
        ''')
    def stampn(self, base, mul=1):
        if not self.timers: return
        self.a(f'''
        s_memtime {TM}
        s_mul_i32 s99, {N}, {mul}
        s_add_u32 m0, s99, {base}
        s_waitcnt lgkmcnt(0)
        v_writelane_b32 v71, s96, m0
        ''')
    def poll(self, vaddr, soff, srd=WS_, exp=TAG):
        a = self.a; L = a.label('POLL'); D = a.label('PDONE')
        a(f'''
        s_mov_b32 {CNT}, {LIMIT}
        {L}:
        buffer_load_dword v14, {vaddr}, {srd}, {soff} offen sc1
        s_waitcnt vmcnt(0)
        v_cmp_ne_u32 vcc, {exp}, v14
        s_cbranch_vccz {D}
        s_sub_u32 {CNT}, {CNT}, 1
        s_cbranch_scc0 {L}
        {D}:
        ''')
    def flag(self, soff):
        self.a(f'''
        s_mov_b64 exec, 1
        buffer_store_dword v15, off, {WS_}, {soff} sc1
        s_mov_b64 exec, -1
        ''')

    def prologue(self):
        a = self.a
        a(f'''
        s_cmp_ge_u32 s2, 256
        s_cbranch_scc1 EXIT
        s_load_dwordx2 s[4:5], s[0:1], 8
        s_load_dwordx2 s[8:9], s[0:1], 16
        s_load_dwordx2 s[12:13], s[0:1], 24
        s_load_dwordx2 s[44:45], s[0:1], 96
        s_load_dwordx2 s[16:17], s[0:1], 32
        s_load_dwordx2 s[20:21], s[0:1], 40
        s_load_dwordx2 s[24:25], s[0:1], 0
        s_load_dwordx2 s[28:29], s[0:1], 56
        s_load_dwordx2 s[32:33], s[0:1], 64
        s_load_dwordx2 s[36:37], s[0:1], 72
        s_load_dwordx2 s[40:41], s[0:1], 80
        v_lshrrev_b32 v1, 6, v0
        v_and_b32 v0, 63, v0
        v_readfirstlane_b32 {W}, v1
        s_and_b32 {X}, s2, 7
        s_lshr_b32 {II}, s2, 3
        ''')
        if self.dbg and not self.timers: a(f's_memrealtime {TM}')
        if self.timers:
            a(f'''
            v_mov_b32 v71, 0
            s_memrealtime s[98:99]
            s_memtime {TM}
            s_waitcnt lgkmcnt(0)
            v_writelane_b32 v71, s96, 0
            v_writelane_b32 v71, s98, 63
            ''')
        sizes = [SZ, SZ, 5120, SZ, 1280, SZ, 640*1728*2, 640*1728*2, 640*1728*2, SZ, WS_SIZE]
        for i, z in enumerate(sizes):
            a(f's_mov_b32 s{4*i+6}, {z}\ns_mov_b32 s{4*i+7}, 0x00020000')
        a(f'''
        v_mul_u32_u24 v16, 205, v0
        v_lshrrev_b32 v16, 11, v16
        v_mul_u32_u24 v17, 10, v16
        v_sub_u32 v17, v0, v17
        s_lshr_b32 {t0}, {II}, 3
        s_lshl_b32 {t1}, {X}, 2
        s_add_u32 {T}, {t1}, {t0}
        s_and_b32 {S}, {II}, 7
        s_lshl_b32 {t0}, {T}, 6
        s_lshl_b32 {t1}, {W}, 4
        s_add_u32 {t0}, {t0}, {t1}
        v_lshlrev_b32 v18, 2, v16
        v_add_u32 v18, {t0}, v18           ; t
        s_mul_i32 {t2}, {S}, 160
        v_mul_u32_u24 v19, 1280, v18
        v_lshl_add_u32 v19, v17, 4, v19
        v_add_u32 v19, {t2}, v19
        v_subrev_u32 v20, 3840, v19
        v_cmp_eq_u32 vcc, 0, v18
        v_mov_b32 v21, 0x40000000
        s_mul_i32 {t2}, {S}, 640
        v_cndmask_b32 v20, v20, v21, vcc
        v_lshlrev_b32 v21, 6, v17
        v_add_u32 v21, {t2}, v21
        s_waitcnt lgkmcnt(0)
        s_load_dword {TAG}, s[44:45], 0
        s_mov_b32 exec_lo, -1
        s_mov_b32 exec_hi, 0xff
        ''')
        for r in range(3): a(f'buffer_load_dwordx4 v[{72+4*r}:{75+4*r}], v20, {K_}, 0 offen offset:{1280*r}')
        for r in range(4): a(f'buffer_load_dwordx4 v[{84+4*r}:{87+4*r}], v19, {K_}, 0 offen offset:{1280*r}')
        for r in range(4): a(f'buffer_load_dwordx4 v[{100+4*r}:{103+4*r}], v19, {V_}, 0 offen offset:{1280*r}')
        for r in range(4): a(f'buffer_load_dwordx4 v[{116+4*r}:{119+4*r}], v21, {SK_}, 0 offen offset:{16*r}')
        a('s_mov_b64 exec, -1')
        a(f'''
        s_and_b32 {t0}, {X}, 1
        s_lshl_b32 {t0}, {t0}, 2
        s_and_b32 {t1}, {II}, 3
        s_add_u32 {G}, {t0}, {t1}
        s_lshr_b32 {t0}, {X}, 1
        s_mul_i32 {t0}, {t0}, 7
        s_lshr_b32 {t1}, {II}, 2
        s_add_u32 {FS}, {t0}, {t1}
        s_mov_b32 {ROLE}, 0
        s_cmp_lt_u32 {FS}, 27
        s_cselect_b32 {ROLE}, 1, 0
        s_cmp_lt_u32 {II}, 20
        s_cselect_b32 {t0}, 2, 0
        s_or_b32 {ROLE}, {ROLE}, {t0}
        s_cmp_ge_u32 {II}, 28
        s_cselect_b32 {ROLE}, 4, {ROLE}
        s_mov_b32 s56, s44
        s_mov_b32 s57, s45
        s_mov_b32 s58, 0
        s_mov_b32 s59, 0x00020000
        s_mov_b32 s60, s44
        s_mov_b32 s61, s45
        s_mov_b32 s62, 0
        s_mov_b32 s63, 0x00020000
        s_bitcmp1_b32 {W}, 0
        s_cselect_b32 s64, s32, s28
        s_cselect_b32 s65, s33, s29
        s_mov_b32 s66, {640*1728*2}
        s_mov_b32 s67, 0x00020000
        s_mul_i32 {sMA}, {W}, 10240
        s_mul_i32 {sMH}, {W}, 14336
        s_add_u32 {sMH}, {sMH}, {L_H}
        ''')
        a(f'''
        v_lshlrev_b32 v1, 4, v0
        v_and_b32 v22, 31, v0              ; t
        v_lshrrev_b32 v23, 5, v0           ; h
        v_lshrrev_b32 v24, 3, v22
        v_mul_u32_u24 v24, 10240, v24
        v_and_b32 v25, 7, v22
        v_lshl_add_u32 v24, v25, 7, v24
        v_bfe_u32 v25, v22, 1, 3           ; swz
        v_xor_b32 v25, v25, v23
        ''')
        for q in range(4):
            a(f'v_xor_b32 v26, {2*q}, v25\nv_lshl_add_u32 v{2+q}, v26, 4, v24')
        a(f'''
        v_lshrrev_b32 v24, 3, v0
        s_lshl_b32 {t0}, {W}, 3
        v_add_u32 v24, {t0}, v24
        v_bfe_u32 v25, v24, 1, 3
        v_and_b32 v26, 7, v0
        v_xor_b32 v25, v25, v26
        v_mul_u32_u24 v24, 1280, v24
        v_lshl_add_u32 v6, v25, 4, v24
        v_add_u32 v7, {sMH}, v1
        v_lshrrev_b32 v24, 4, v22
        v_mul_u32_u24 v24, {HST}, v24
        v_lshl_add_u32 v24, v23, 8, v24
        v_and_b32 v25, 15, v0
        v_lshl_add_u32 v8, v25, 4, v24
        s_cmp_eq_u32 {W}, 3
        s_cselect_b32 {t0}, 23, 27
        v_min_u32 v9, {t0}, v0
        v_lshlrev_b32 v9, 7, v9
        v_and_b32 v24, 1, v0
        v_bfe_u32 v26, v0, 1, 1
        v_lshl_add_u32 v24, v26, 3, v24
        s_lshl_b32 {t0}, {G}, 2
        s_lshr_b32 {t1}, {W}, 1
        s_add_u32 {t0}, {t0}, {t1}
        s_lshl_b32 {t0}, {t0}, 2
        s_and_b32 {t1}, {W}, 1
        s_lshl_b32 {t1}, {t1}, 1
        s_add_u32 {t0}, {t0}, {t1}
        v_add_u32 v24, {t0}, v24
        v_lshlrev_b32 v10, 7, v24
        v_mul_u32_u24 v24, 336, v25
        v_lshrrev_b32 v26, 4, v0
        v_lshl_add_u32 v24, v26, 4, v24
        s_mul_i32 {t0}, {W}, 5376
        s_add_u32 {t0}, {t0}, {L_R}
        v_add_u32 v11, {t0}, v24
        s_lshl_b32 {t0}, {W}, 2
        v_add_u32 v24, {t0}, v16
        v_min_u32 v24, 15, v24
        v_mul_u32_u24 v26, 336, v24
        v_lshl_add_u32 v26, v17, 5, v26
        v_add_u32 v12, {L_R}, v26
        v_mul_u32_u24 v26, 1280, v24
        v_lshl_add_u32 v13, v17, 4, v26
        s_waitcnt lgkmcnt(0)
        s_mul_i32 {TAG}, {TAG}, 0x9E3779B1
        s_add_u32 {TAG}, {TAG}, 0x7F4A7C15
        v_mov_b32 v15, {TAG}
        ''')

    def p0(self):
        a = self.a
        a(f'''
        s_mul_i32 {t0}, {X}, 20
        s_add_u32 {t0}, {t0}, {II}
        s_lshl_b32 {t0}, {t0}, 2
        s_add_u32 {t0}, {t0}, {W}
        s_lshl_b32 {t1}, {t0}, 12
        v_add_u32 v38, {t1}, v1
        v_subrev_u32 v39, 8, v38
        s_lshl_b32 {t1}, {t0}, 1
        v_mov_b32 v36, {t1}
        v_mov_b32 v40, 0
        v_mov_b32 v41, 0
        s_waitcnt vmcnt(0)
        ''')
        self.stamp(1)
        a(f'''
        s_bitcmp1_b32 {ROLE}, 1
        s_cbranch_scc0 P0_NOH
        s_mov_b64 exec, -2
        buffer_load_dwordx2 v[40:41], v39, {H_}, 0 offen
        s_mov_b64 exec, -1
        ''')
        for y in range(4):
            if y: a(f'buffer_load_dwordx2 v[{40+6*y}:{41+6*y}], v39, {H_}, 0 offen offset:{1024*y}')
            a(f'buffer_load_dwordx4 v[{42+6*y}:{45+6*y}], v38, {H_}, 0 offen offset:{1024*y}')
        a(f'''
        buffer_load_ushort v37, v36, {D_}, 0 offen
        P0_NOH:
        s_mov_b32 {t2}, 0x05040100
        s_mov_b32 {t3}, 0x07060302
        s_lshl_b32 {t0}, {W}, 1
        v_lshrrev_b32 v22, 1, v16
        v_add_u32 v22, {t0}, v22
        v_and_b32 v23, 7, v17
        v_xor_b32 v22, v22, v23
        v_lshlrev_b32 v22, 4, v22
        v_and_b32 v23, 1, v16
        v_lshl_add_u32 v22, v23, 3, v22
        v_lshl_add_u32 v22, v17, 10, v22
        v_add_u32 v22, {L_X}, v22
        s_mov_b32 exec_lo, -1
        s_mov_b32 exec_hi, 0xff
        ''')
        for j in range(8):
            d = j >> 1; sel = t3 if j & 1 else t2
            P = 132; U = 140 + 8 * (j & 1); VV = 156
            for s_ in range(1, 7):
                a(f'v_perm_b32 v{P+s_}, v{72+4*(s_-1)+d}, v{72+4*s_+d}, {sel}')
            for r in range(4):
                a(f'v_dot2_f32_bf16 v{U+r}, v{P+r+1}, v{117+2*j}, 0')
            for r in range(4):
                a(f'v_dot2_f32_bf16 v{U+r}, v{P+r+3}, v{116+2*j}, v{U+r}')
            for r in range(4):
                if j & 1: a(f'v_and_b32 v{VV+r}, 0xffff0000, v{100+4*r+d}')
                else: a(f'v_lshlrev_b32 v{VV+r}, 16, v{100+4*r+d}')
            a(f'''
            v_pk_mul_f32 v[{U}:{U+1}], v[{U}:{U+1}], v[{VV}:{VV+1}]
            v_pk_mul_f32 v[{U+2}:{U+3}], v[{U+2}:{U+3}], v[{VV+2}:{VV+3}]
            v_cvt_pk_bf16_f32 v{U+4}, v{U}, v{U+1}
            v_cvt_pk_bf16_f32 v{U+5}, v{U+2}, v{U+3}
            ds_write_b64 v22, v[{U+4}:{U+5}] offset:{128*j}
            ''')
        a(f'''
        s_mov_b64 exec, -1
        s_mul_i32 {t0}, {W}, 20
        v_lshrrev_b32 v22, 3, v0
        v_add_u32 v22, {t0}, v22
        v_and_b32 v23, 7, v0
        ''')
        for y in range(3):
            a(f'''
            v_add_u32 v24, {8*y}, v22
            v_bfe_u32 v25, v24, 3, 3
            v_xor_b32 v25, v25, v23
            v_lshlrev_b32 v25, 4, v25
            v_lshl_add_u32 v25, v24, 7, v25
            v_add_u32 v{26+y}, {L_X}, v25
            ''')
        a(f'''
        s_mul_i32 {t0}, {S}, 80
        v_add_u32 v22, {t0}, v22
        v_lshlrev_b32 v22, 12, v22
        v_lshl_add_u32 v22, v23, 4, v22
        s_lshl_b32 {t0}, {T}, 7
        s_add_u32 {t0}, {t0}, {UT}
        s_add_u32 {t1}, {t0}, 0x8000
        s_add_u32 {t2}, {t0}, 0x10000
        s_waitcnt lgkmcnt(0)
        ''')
        self.stamp(55)
        a(f'''
        s_barrier
        ds_read_b128 v[72:75], v26
        ds_read_b128 v[76:79], v27
        s_mov_b32 exec_hi, 0
        ds_read_b128 v[80:83], v28
        s_mov_b32 exec_hi, -1
        s_waitcnt lgkmcnt(2)
        buffer_store_dwordx4 v[72:75], v22, {WS_}, {t0} offen sc1
        s_waitcnt lgkmcnt(1)
        buffer_store_dwordx4 v[76:79], v22, {WS_}, {t1} offen sc1
        s_waitcnt lgkmcnt(0)
        s_mov_b32 exec_hi, 0
        buffer_store_dwordx4 v[80:83], v22, {WS_}, {t2} offen sc1
        s_mov_b32 exec_hi, -1
        s_lshl_b32 {t4}, {S}, 2
        s_add_u32 {t4}, {t4}, {W}
        s_lshl_b32 {t4}, {t4}, 5
        s_add_u32 {t4}, {t4}, {T}
        s_lshl_b32 {t4}, {t4}, 7
        s_add_u32 {t4}, {t4}, {FP0}
        ''')

    def w1_setup(self):
        self.a(f'''
        v_lshrrev_b32 v66, 3, v0
        v_bfe_u32 v67, v0, 4, 1
        v_lshlrev_b32 v67, 1, v67
        s_and_b32 {t0}, {W}, 1
        s_lshl_b32 {t0}, {t0}, 2
        v_or_b32 v67, {t0}, v67
        v_and_b32 v68, 7, v0
        v_xor_b32 v67, v67, v68
        v_mul_u32_u24 v66, 3456, v66
        v_lshl_add_u32 v64, v67, 4, v66
        s_lshr_b32 {t0}, {W}, 1
        s_mul_i32 {t0}, {t0}, {8*3456}
        s_lshl_b32 {sW1o}, {FS}, 7
        s_add_u32 {sW1o}, {sW1o}, {t0}
        v_lshrrev_b32 v66, 4, v0
        v_and_b32 v67, 1, v66              ; mat
        v_lshrrev_b32 v66, 1, v66          ; h
        v_lshlrev_b32 v66, 11, v66
        v_lshl_add_u32 v66, v67, 10, v66
        v_bfe_u32 v68, v0, 2, 2            ; r
        v_lshl_add_u32 v66, v68, 7, v66
        v_lshrrev_b32 v68, 1, v68
        v_lshl_add_u32 v68, v67, 1, v68    ; sigma
        v_xor_b32 v68, {W}, v68
        v_lshl_add_u32 v66, v68, 5, v66
        v_and_b32 v68, 3, v0
        v_lshl_add_u32 v66, v68, 3, v66
        v_add_u32 v65, {L_W1}, v66
        ''')
    def w1_issue(self, nks):
        a = self.a
        a(f's_lshl_b32 {t0}, {W}, 10\ns_add_u32 m0, {t0}, {L_W1}')
        for i in range(nks):
            a(f'''
            buffer_load_dwordx4 v64, {W1_}, {sW1o} offen lds
            s_add_u32 m0, m0, 4096
            s_add_u32 {sW1o}, {sW1o}, {16*3456}
            ''')
    def w1_consume(self, ks0, nks):
        a = self.a
        a('s_waitcnt vmcnt(0)\ns_barrier')
        for i in range(nks):
            r = 72 + 4 * (ks0 + i)
            a(f'ds_read_b64_tr_b16 v[{r}:{r+1}], v65 offset:{4096*i}')
            a(f'ds_read_b64_tr_b16 v[{r+2}:{r+3}], v65 offset:{4096*i+512}')
        a('s_waitcnt lgkmcnt(0)\ns_barrier')
    @staticmethod
    def wd_reg(ks, j):
        f = ks * 5 + j
        return f'a[{4*f}:{4*f+3}]' if f < 64 else f'v[{232+4*(f-64)}:{235+4*(f-64)}]'
    @staticmethod
    def wd_half(ks, j, e):
        f = ks * 5 + j
        return f'a[{4*f+2*e}:{4*f+2*e+1}]' if f < 64 else f'v[{232+4*(f-64)+2*e}:{233+4*(f-64)+2*e}]'
    def wd_addr(self):
        a = self.a
        for y in range(5):
            a(f'''
            v_add_u32 v70, {64*y}, v0
            v_mul_u32_u24 v14, 6554, v70
            v_lshrrev_b32 v14, 16, v14
            v_mul_u32_u24 v69, 10, v14
            v_sub_u32 v70, v70, v69
            v_mul_u32_u24 v14, 1280, v14
            v_lshl_add_u32 v{64+y}, v70, 4, v14
            ''')
        a(f'''
        v_lshrrev_b32 v70, 5, v0
        v_bfe_u32 v14, v0, 4, 1
        v_lshlrev_b32 v70, 2, v70
        v_add_u32 v70, v70, v14
        v_bfe_u32 v14, v0, 2, 2
        v_lshl_add_u32 v70, v70, 2, v14
        v_mul_u32_u24 v70, 160, v70
        v_and_b32 v14, 3, v0
        v_lshl_add_u32 v70, v14, 3, v70
        s_mul_i32 {t5}, {W}, 20480
        s_add_u32 {t5}, {t5}, {L_WD}
        v_add_u32 v69, {t5}, v70
        ''')
    def wd_issue(self, nks):
        a = self.a
        a(f's_mov_b32 m0, {t5}')
        for i in range(nks):
            for y in range(5):
                a(f'buffer_load_dwordx4 v{64+y}, {WD_}, {sWDo} offen lds\ns_add_u32 m0, m0, 1024')
            a(f's_add_u32 {sWDo}, {sWDo}, {32*1280}')
    def wd_subs(self):
        a = self.a
        bt = [4, 4, 4, 2]
        a('WD_I0:')
        a(f'''
        s_mul_i32 {sWDo}, {W}, {448*1280}
        s_mul_i32 {t0}, {S}, 160
        s_add_u32 {sWDo}, {sWDo}, {t0}
        ''')
        self.wd_addr(); self.wd_issue(4)
        a(f's_setpc_b64 {RET2}')
        for k in range(4):
            a(f'WD_C{k}:')
            self.wd_addr()
            a('s_waitcnt vmcnt(0)')
            for i in range(bt[k]):
                for j in range(5):
                    for e in range(2):
                        a(f'ds_read_b64_tr_b16 {self.wd_half(4*k+i, j, e)}, v69 offset:{5120*i + 32*j + 1280*e}')
            a('s_waitcnt lgkmcnt(0)')
            if k < 3: self.wd_issue(bt[k+1])
            a(f's_setpc_b64 {RET2}')

    def hbuild(self):
        a = self.a
        a(f'''
        s_mul_i32 {t0}, {W}, {L_CW}
        s_add_u32 {t1}, {t0}, 4080
        v_sub_u32 v38, {t1}, v1
        v_subrev_u32 v38, 3072, v38
        s_mov_b32 {t2}, 0xffff
        v_mov_b32 v16, 0
        v_mov_b32 v17, 0
        v_mov_b32 v18, 0
        v_mov_b32 v19, 0
        v_lshrrev_b32 v39, 1, v1
        s_add_u32 {t1}, {t0}, {L_U}
        v_add_u32 v39, {t1}, v39
        ds_write_b64 v39, v[16:17]
        v_bfe_u32 v39, v0, 1, 2
        v_mul_u32_u24 v39, 4160, v39
        v_and_b32 v36, 1, v0
        v_lshl_add_u32 v39, v36, 4, v39
        s_add_u32 {t1}, {t0}, 4096
        v_add_u32 v39, {t1}, v39
        ds_write_b128 v39, v[16:19]
        ''')
        for y in range(4):
            D = lambda k: f'v{42+6*y+k}'
            for s_ in range(4):
                r = 16 + 4 * s_
                for o in range(4):
                    if s_ == 0: a(f'v_alignbit_b32 v{r+o}, {D(3-o)}, {D(3-o)}, 16')
                    if s_ == 1: a(f'v_bfi_b32 v{r+o}, {t2}, {D(3-o)}, {D(2-o)}')
                    if s_ == 2: a(f'v_alignbit_b32 v{r+o}, {D(2-o)}, {D(2-o)}, 16')
                    if s_ == 3: a(f'v_bfi_b32 v{r+o}, {t2}, {D(2-o)}, {D(1-o)}')
                a(f'ds_write_b128 v38, v[{r}:{r+3}] offset:{4160*s_ + 3072 - 1024*y}')
        a(f'''
        v_and_b32 v16, 15, v0              ; m / n
        v_lshrrev_b32 v17, 4, v0           ; q
        v_lshrrev_b32 v18, 3, v16
        v_add_u32 v18, 2, v18
        v_cmp_eq_u32 vcc, v17, v18
        v_and_b32 v19, 1, v0
        v_lshlrev_b32 v19, 4, v19
        v_lshlrev_b32 v37, v19, v37
        v_cndmask_b32 v37, 0, v37, vcc
        v_bfe_u32 v19, v0, 1, 2
        ''')
        for d in range(4):
            a(f'v_cmp_eq_u32 vcc, {d}, v19\ns_nop 1\nv_cndmask_b32 v{32+d}, 0, v37, vcc')
        a(f'''
        v_sub_u32 v18, 3, v16
        v_and_b32 v18, 3, v18
        v_mul_u32_u24 v18, 4160, v18
        v_lshl_add_u32 v18, v17, 4, v18
        v_lshrrev_b32 v19, 2, v16
        v_lshlrev_b32 v19, 3, v19
        v_sub_u32 v18, v18, v19
        s_add_u32 {t1}, {t0}, 24
        v_add_u32 v36, {t1}, v18
        v_lshlrev_b32 v18, 5, v16
        v_lshl_add_u32 v18, v17, 4, v18
        s_add_u32 {t1}, {t0}, {L_U + 32}
        v_add_u32 v39, {t1}, v18
        s_lshl_b32 {t1}, {W}, 2
        v_add_u32 v18, {t1}, v17
        v_xor_b32 v18, v18, v16
        v_lshlrev_b32 v18, 3, v18
        v_lshl_add_u32 v18, v16, 7, v18
        v_add_u32 v66, {L_X}, v18
        v_bfe_u32 v18, v0, 1, 1
        v_lshl_add_u32 v18, v17, 1, v18
        s_lshl_b32 {t1}, {W}, 3
        v_add_u32 v18, {t1}, v18
        v_bfe_u32 v19, v0, 2, 2
        v_and_b32 v20, 1, v0
        v_lshl_add_u32 v19, v19, 2, v20
        v_and_b32 v20, 15, v18
        v_xor_b32 v19, v19, v20
        v_lshlrev_b32 v19, 3, v19
        v_lshl_add_u32 v19, v18, 7, v19
        v_add_u32 v67, {L_X}, v19
        v_xor_b32 v69, 16, v67
        v_lshrrev_b32 v18, 3, v0
        v_mul_u32_u24 v18, 20480, v18
        v_and_b32 v19, 7, v0
        v_lshl_add_u32 v68, v19, 4, v18
        v_and_b32 v70, 31, v0
        v_lshlrev_b32 v70, 7, v70
        s_waitcnt lgkmcnt(0)
        ''')
        for b in range(32):
            a(f'ds_read_b64 a[{4*b}:{4*b+1}], v36 offset:{64*(63-b)}')
            a(f'ds_read_b64 a[{4*b+2}:{4*b+3}], v36 offset:{64*(63-b)+8}')

    def conv(self):
        a = self.a
        a(f'''
        s_mul_i32 {t0}, {II}, 52
        s_lshr_b32 {t0}, {t0}, 8           ; i/5
        s_lshl_b32 {t1}, {X}, 2
        s_add_u32 {t0}, {t0}, {t1}
        s_lshl_b32 {t0}, {t0}, 12
        s_add_u32 {t0}, {t0}, {FP0}
        s_mul_i32 {t1}, {X}, 20
        s_add_u32 {t1}, {t1}, {II}         ; cw
        s_lshl_b32 {t2}, {t1}, 2
        s_add_u32 {t2}, {t2}, {W}
        s_lshl_b32 {t2}, {t2}, 12
        s_add_u32 {t2}, {t2}, {UT}
        s_mul_i32 {t3}, {W}, {L_CW}
        s_add_u32 m0, {t3}, {L_U + 512}
        s_mul_i32 {t3}, {W}, 1280
        s_add_u32 {t3}, {t3}, {t1}
        s_lshl_b32 {t3}, {t3}, 7
        s_add_u32 {sO1}, {t3}, {YB}
        s_mul_i32 {t3}, {W}, 160
        s_add_u32 {t3}, {t3}, {t1}
        s_lshl_b32 {t3}, {t3}, 7
        s_add_u32 {sO2}, {t3}, {FY}
        ''')
        self.poll('v70', t0)
        self.stamp(4)
        for y in range(4):
            a(f'buffer_load_dwordx4 v1, {WS_}, {t2} offen offset:{1024*y} sc1 lds')
        a('s_waitcnt vmcnt(0)')
        self.stamp(5)
        ds = DS(a)
        Areg = {b: f'a[{4*b}:{4*b+3}]' for b in range(32)}
        Breg = {e: f'a[{128+4*(e+7)}:{131+4*(e+7)}]' for e in range(-7, 25)}
        def rng(r):
            m = re.fullmatch(r'([av])\[(\d+):(\d+)\]', r); return m.group(1), int(m.group(2))
        def ldA(b):
            k, r = rng(Areg[b])
            return [(f'ds_read_b64 {k}[{r}:{r+1}], v36 offset:{64*(63-b)}', None),
                    (f'ds_read_b64 {k}[{r+2}:{r+3}], v36 offset:{64*(63-b)+8}', ('A', b))]
        def ldB(e): return [(f'ds_read_b128 {Breg[e]}, v39 offset:{64*(e+7)}', ('B', e))]
        for b in range(32): ds.done.add(('A', b))
        acc = {0: 16, 1: 20, 2: 24, 3: 28, 4: 16, 5: 20, 6: 48, 7: 52}
        def mf(j, b, e):
            if b is not None: ds.need(('A', b))
            ds.need(('B', e))
            c = f'v[{acc[j]}:{acc[j]+3}]'
            if b is None: a(f'v_mfma_f32_16x16x32_bf16 {c}, v[32:35], {Breg[e]}, 0')
            else: a(f'v_mfma_f32_16x16x32_bf16 {c}, {Areg[b]}, {Breg[e]}, {c}')
        def run(mfs, fill, per=1):
            fill = list(fill)
            for m_ in mfs:
                mf(*m_)
                for _ in range(per):
                    if fill: fill.pop(0)()
            while fill: fill.pop(0)()
        L = lambda items: [(lambda it=it: ds.op(*it)) for it in items]
        nop = lambda: None
        def epi(c, tiles, tmp):
            F = []
            buf = (c & 1) * 4096
            for jj, j in enumerate(tiles):
                r = acc[j]
                F.append(lambda r=r, jj=jj: a(f'v_cvt_pk_bf16_f32 v{tmp+2*jj}, v{r}, v{r+1}\nv_cvt_pk_bf16_f32 v{tmp+2*jj+1}, v{r+2}, v{r+3}'))
                F.append(lambda jj=jj: ds.op(f'ds_write_b64 v66, v[{tmp+2*jj}:{tmp+2*jj+1}] offset:{buf + 2048*jj}', ('W', c, jj)))
            return F
        def epi2(c, tmp):
            buf = (c & 1) * 4096
            F = [lambda: ds.op(f'ds_read_b64_tr_b16 v[{tmp}:{tmp+1}], v67 offset:{buf}', None),
                 lambda: ds.op(f'ds_read_b64_tr_b16 v[{tmp+2}:{tmp+3}], v69 offset:{buf}', ('R', c))]
            return F
        def ystore(c, tmp):
            def f():
                ds.need(('R', c))
                a(f'buffer_store_dwordx4 v[{tmp}:{tmp+3}], v68, {WS_}, {sO1} offen sc1\ns_add_u32 {sO1}, {sO1}, {32*20480}')
            return f
        def bar(tag):
            def f():
                ds.need(tag); a('s_barrier')
            return f
        def yflag(n):
            def f():
                a(f's_waitcnt vmcnt({n})'); self.flag(sO2); a(f's_add_u32 {sO2}, {sO2}, {640*128}')
            return f
        def w1i(n):
            F = [lambda: a(f's_lshl_b32 {t0}, {W}, 10\ns_add_u32 m0, {t0}, {L_W1}')]
            for i in range(n):
                F.append(lambda: a(f'buffer_load_dwordx4 v64, {W1_}, {sW1o} offen lds\ns_add_u32 m0, m0, 4096\ns_add_u32 {sW1o}, {sW1o}, {16*3456}'))
            return F
        def w1c(ks0, n):
            F = []
            for i in range(n):
                r = 72 + 4 * (ks0 + i)
                o = 4096 * ((ks0 + i) & 15)
                F += L([(f'ds_read_b64_tr_b16 v[{r}:{r+1}], v65 offset:{o}', None),
                        (f'ds_read_b64_tr_b16 v[{r+2}:{r+3}], v65 offset:{o+512}', ('W1', ks0 + i))])
            return F
        l0 = []
        for r in range(8): l0 += ldB(-r) + ldB(8 - r)
        l1 = []
        for r in range(8): l1 += ldB(16 - r) + ldB(24 - r)
        for it in l0[:4]: ds.op(*it)
        m0_ = [(0, None, 0), (1, None, 8)]
        for r in range(8): m0_ += [(0, r, -r), (1, r, 8 - r), (1, 8 + r, -r)]
        run(m0_, L(l0[4:] + l1))
        self.stamp(6)
        slots = [f'v[{200+4*k}:{203+4*k}]' for k in range(8)]
        def extras(r, sl):
            it = []
            for k in range(4):
                Areg[8*(4+k) + r] = sl[k]; Breg[8*(4+k) - r] = sl[4+k]
            for k in range(4): it += ldB(8*(4+k) - r) + ldA(8*(4+k) + r)
            return it
        m1 = [(2, None, 16), (3, None, 24)]
        for r in range(8):
            for j in (2, 3):
                for be in range(j + 1): m1.append((j, 8*be + r, 8*(j-be) - r))
        F = [nop, nop] + epi(0, (0, 1), 56) + [nop, nop, bar(('W', 0, 1))] + epi2(0, 60) + [nop]*4 + [ystore(0, 60)]
        F += w1i(16) + L(extras(0, slots)) + [nop] * 14 + [yflag(16)]
        run(m1, F)
        self.stamp(7)
        slots1 = [f'v[{232+4*k}:{235+4*k}]' for k in range(6)] + ['v[40:43]', 'v[44:47]']
        for r in range(8):
            mm = []
            prs = [(be, ga) for be in range(8) for ga in range(8) if 4 <= be + ga <= 7]
            prs.sort(key=lambda p: max(p))
            if r == 0:
                mm += [(j, None, 8*j) for j in (4, 5, 6, 7)]
            mm += [(be + ga, 8*be + r, 8*ga - r) for be, ga in prs]
            F = []
            if r == 0: F += [nop, nop] + epi(1, (2, 3), 56) + [nop, nop, bar(('W', 1, 1))] + epi2(1, 60) + [nop]*3 + [ystore(1, 60)]
            if r < 7:
                if r == 0: sl = slots1
                else:
                    p = r - 1
                    sl = [Areg[8*k + p] for k in range(4)] + [Breg[8*k - p] for k in range(4)]
                F += L(extras(r + 1, sl))
            if r == 2: F += [yflag(0), lambda: a('s_barrier')] + w1c(16, 6)
            if r == 3: F += w1c(22, 7)
            if r == 4: F += w1c(29, 3) + [bar(('W1', 31))] + w1i(8)[:7]
            if r == 5: F += w1i(8)[7:]
            run(mm, F)
        self.stamp(8)
        for f in epi(2, (4, 5), 56) + epi(3, (6, 7), 60): f()
        bar(('W', 3, 1))()
        for f in epi2(2, 56) + epi2(3, 60) + [ystore(2, 56), ystore(3, 60)]: f()
        a('s_waitcnt vmcnt(2)\ns_barrier')
        for f in w1c(32, 8): f()
        yflag(1)(); yflag(1)()
        a('s_waitcnt lgkmcnt(0)\ns_barrier')
        self.stamp(9)

    def ln_setup(self):
        a = self.a
        a(f'''
        s_lshl_b32 {t0}, {X}, 2
        s_add_u32 {G}, {t0}, {II}
        s_sub_u32 {G}, {G}, 28             ; TL
        v_and_b32 v16, 3, v0
        s_lshl_b32 {t0}, {W}, 2
        v_add_u32 v16, {t0}, v16
        v_lshrrev_b32 v17, 2, v0           ; kappa
        v_mul_u32_u24 v18, 160, v16
        ''')
        for u in range(5):
            a(f'''
            v_add_u32 v19, {16*u}, v17
            v_mul_u32_u24 v20, 205, v19
            v_lshrrev_b32 v20, 11, v20
            v_mul_u32_u24 v20, {2560-160}, v20
            v_lshl_add_u32 v20, v19, 4, v20
            v_add_u32 v{172+u}, v20, v18
            ''')
        a(f'''
        v_mul_u32_u24 v18, 1280, v16
        v_lshl_add_u32 v177, v17, 4, v18
        v_and_b32 v18, 7, v16
        v_lshlrev_b32 v18, 4, v18
        v_lshl_add_u32 v18, v17, 8, v18
        v_lshrrev_b32 v19, 3, v16
        v_lshl_add_u32 v178, v19, 3, v18
        v_min_u32 v18, 39, v0
        s_mul_i32 {t0}, {W}, 40
        v_add_u32 v18, {t0}, v18
        v_lshlrev_b32 v179, 7, v18
        v_and_b32 v18, 7, v0
        s_lshl_b32 {t0}, {W}, 3
        v_add_u32 v18, {t0}, v18
        v_lshlrev_b32 v180, 7, v18
        ''')
    def red(self, r):
        self.a(f'''
        v_add_f32_dpp v{r}, v{r}, v{r} row_ror:4 row_mask:0xf bank_mask:0xf
        v_add_f32_dpp v{r}, v{r}, v{r} row_ror:8 row_mask:0xf bank_mask:0xf
        v_mov_b32 v{r+1}, v{r}
        v_permlane16_swap_b32 v{r}, v{r+1}
        v_add_f32 v{r}, v{r}, v{r+1}
        v_mov_b32 v{r+1}, v{r}
        v_permlane32_swap_b32 v{r}, v{r+1}
        v_add_f32 v{r}, v{r}, v{r+1}
        ''')
    def ln_subs(self):
        a = self.a
        P = lambda k: f'v[{72+2*k}:{73+2*k}]'
        a('LN_ST:')
        a(f'v_pk_add_f32 v[182:183], {P(0)}, {P(1)}\nv_pk_add_f32 v[184:185], {P(2)}, {P(3)}')
        for k in range(4, 20):
            r = 182 + 2 * (k & 1)
            a(f'v_pk_add_f32 v[{r}:{r+1}], v[{r}:{r+1}], {P(k)}')
        a('v_pk_add_f32 v[182:183], v[182:183], v[184:185]\nv_add_f32 v182, v182, v183')
        self.red(182)
        a(f'v_mul_f32 v182, {hex(f2u(1/640))}, v182')
        for k in range(20):
            a(f'v_pk_add_f32 {P(k)}, {P(k)}, v[182:183] op_sel_hi:[1,0] neg_lo:[0,1] neg_hi:[0,1]')
            if k >= 1:
                j = k - 1; r = 184 + 2 * (j & 1)
                if j < 2: a(f'v_pk_mul_f32 v[{r}:{r+1}], {P(j)}, {P(j)}')
                else: a(f'v_pk_fma_f32 v[{r}:{r+1}], {P(j)}, {P(j)}, v[{r}:{r+1}]')
        a(f'''
        v_pk_fma_f32 v[186:187], {P(19)}, {P(19)}, v[186:187]
        v_pk_add_f32 v[184:185], v[184:185], v[186:187]
        v_add_f32 v184, v184, v185
        ''')
        self.red(184)
        a(f'''
        v_mov_b32 v185, {hex(f2u(1e-5))}
        v_fmac_f32 v185, {hex(f2u(1/640))}, v184
        v_rsq_f32 v184, v185
        s_nop 0
        s_setpc_b64 {RET2}
        ''')
        a('LN_FIN:')
        for k in range(20):
            r = 188 + 2 * (k & 3)
            a(f'''
            v_lshlrev_b32 v{r}, 16, v{112+k}
            v_and_b32 v{r+1}, 0xffff0000, v{112+k}
            v_pk_fma_f32 v[{r}:{r+1}], v[{r}:{r+1}], v[184:185], 1.0 op_sel_hi:[1,0,0]
            v_pk_fma_f32 {P(k)}, {P(k)}, v[{r}:{r+1}], v[182:183] op_sel_hi:[1,1,0]
            ''')
        for k in range(20): a(f'v_cvt_pk_bf16_f32 v{132+k}, v{72+2*k}, v{73+2*k}')
        a(f's_call_b64 {RET2}, LN_ST')
        for k in range(20):
            a(f'v_pk_mul_f32 {P(k)}, {P(k)}, v[184:185] op_sel_hi:[1,0]')
            if k: a(f'v_cvt_pk_bf16_f32 v{152+k-1}, v{72+2*k-2}, v{73+2*k-2}')
            if k % 4 == 1 and k > 4:
                u = k // 4 - 1
                a(f'buffer_store_dwordx4 v[{152+4*u}:{155+4*u}], v177, {WS_}, {sO2} offen offset:{256*u} sc1')
        a(f'''
        v_cvt_pk_bf16_f32 v171, v110, v111
        buffer_store_dwordx4 v[168:171], v177, {WS_}, {sO2} offen offset:1024 sc1
        ''')
        for u in range(5):
            a(f'buffer_store_dwordx4 v[{132+4*u}:{135+4*u}], v{172+u}, {WS_}, {sO1} offen sc1')
        self.stampn(42)
        a('s_waitcnt vmcnt(0)')
        self.flag(sFH)
        a(f's_setpc_b64 {RET}')
    def ln_unpack(self, src):
        for k in range(20):
            self.a(f'v_lshlrev_b32 v{72+2*k}, 16, v{src+k}\nv_and_b32 v{73+2*k}, 0xffff0000, v{src+k}')
    def ln_yload(self):
        a = self.a
        for u in range(5):
            for h in range(2):
                a(f'buffer_load_dwordx2 v[{112+4*u+2*h}:{113+4*u+2*h}], v178, {WS_}, {t2} offen offset:{128*h} sc1')
            if u < 4: a(f's_add_u32 {t2}, {t2}, 4096')
    def ln_offs(self, layer):
        self.a(f'''
        s_lshl_b32 {t1}, {N}, 5
        s_add_u32 {t1}, {t1}, {G}
        s_mul_i32 {t0}, {t1}, 20480
        s_add_u32 {sO1}, {t0}, {XB + layer*SZ}
        s_add_u32 {sO2}, {t0}, {AB + layer*SZ}
        s_add_u32 {t2}, {t0}, {YB}
        s_lshl_b32 {t3}, {t1}, 2
        s_add_u32 {t3}, {t3}, {W}
        s_lshl_b32 {t3}, {t3}, 7
        s_add_u32 {sFH}, {t3}, {FA + layer*4*128*128}
        ''')
    def ln1(self):
        a = self.a
        self.ln_offs(0)
        for u in range(5): a(f'buffer_load_dwordx4 v[{132+4*u}:{135+4*u}], v177, {Q_}, {t0} offen offset:{256*u}')
        a(f'''
        s_lshl_b32 {t3}, {N}, 2
        s_lshr_b32 {t4}, {G}, 3
        s_add_u32 {t3}, {t3}, {t4}
        s_mul_i32 {t3}, {t3}, {160*128}
        s_add_u32 {t3}, {t3}, {FY}
        s_waitcnt vmcnt(0)
        ''')
        self.stampn(30)
        self.ln_unpack(132)
        a(f's_call_b64 {RET2}, LN_ST')
        self.stampn(34)
        self.poll('v179', t3)
        a('s_barrier')
        self.stampn(10)
        self.ln_yload()
        a(f's_waitcnt vmcnt(0)')
        self.stampn(38)
        a(f's_call_b64 {RET}, LN_FIN')
        self.stampn(14)
    def ln2(self):
        a = self.a
        self.ln_offs(1)
        a(f's_add_u32 {t4}, {t0}, {XB}')
        for u in range(5): a(f'buffer_load_dwordx4 v[{132+4*u}:{135+4*u}], v{172+u}, {WS_}, {t4} offen sc1')
        self.ln_yload()
        a(f'''
        s_lshl_b32 {t3}, {t1}, 12
        s_add_u32 {t3}, {t3}, {FF}
        s_add_u32 {t4}, {t0}, {FB}
        s_waitcnt vmcnt(10)
        ''')
        self.ln_unpack(132)
        self.poll('v180', t3)
        self.stampn(18)
        for u in range(5): a(f'buffer_load_dwordx4 v[{152+4*u}:{155+4*u}], v{172+u}, {WS_}, {t4} offen sc1')
        for k in range(20):
            if k % 4 == 0: a(f's_waitcnt vmcnt({4 - k//4})')
            r = 188 + 2 * (k & 3)
            a(f'''
            v_lshlrev_b32 v{r}, 16, v{152+k}
            v_and_b32 v{r+1}, 0xffff0000, v{152+k}
            v_pk_add_f32 v[{72+2*k}:{73+2*k}], v[{72+2*k}:{73+2*k}], v[{r}:{r+1}]
            ''')
        a(f's_call_b64 {RET2}, LN_ST\ns_call_b64 {RET}, LN_FIN')
        self.stampn(22)

    def gelu_ops(self, acc):
        c1, c2 = -2.0*0.7978845608028654*1.4426950408889634, -2.0*0.7978845608028654*1.4426950408889634*0.044715
        O = []
        for p in range(4):
            g = acc + 2 * p; u = g + 8
            O += [f'v_pk_mul_f32 v[68:69], v[{g}:{g+1}], v[{g}:{g+1}]',
                  f'v_pk_mul_f32 v[{u}:{u+1}], v[{g}:{g+1}], v[{u}:{u+1}]',
                  f'v_pk_fma_f32 v[68:69], v[68:69], s[100:101], v[70:71] op_sel_hi:[1,0,0]',
                  f'v_pk_mul_f32 v[{g}:{g+1}], v[{g}:{g+1}], v[68:69]',
                  f'v_exp_f32 v{g}, v{g}', f'v_exp_f32 v{g+1}, v{g+1}',
                  f'v_pk_add_f32 v[{g}:{g+1}], v[{g}:{g+1}], 1.0 op_sel_hi:[1,0]',
                  f'v_rcp_f32 v{g}, v{g}', f'v_rcp_f32 v{g+1}, v{g+1}',
                  f'v_pk_mul_f32 v[{u}:{u+1}], v[{u}:{u+1}], v[{g}:{g+1}]',
                  f'v_cvt_pk_bf16_f32 v{64+p}, v{u}, v{u+1}']
        return O
    def a_dma(self, slot, soff, srd=WS_):
        O = [f's_add_u32 m0, {sMA}, {slot}']
        for cb in range(10):
            O.append(f'buffer_load_dwordx4 v6, {srd}, {soff} offen offset:{128*cb} sc1 lds' + ('\ns_add_u32 m0, m0, 896' if cb < 9 else ''))
        return O
    def h_dma(self, soff, srd=WS_):
        O = [f's_mov_b32 m0, {sMH}']
        for k in range(14):
            s_ = f'buffer_load_dwordx4 v1, {srd}, {soff} offen offset:{1024*(k&3)} sc1 lds'
            if k & 3 == 3: s_ += f'\ns_add_u32 m0, m0, 4096\ns_add_u32 {soff}, {soff}, 4096'
            O.append(s_)
        return O
    def q_unit(self, slot, acc, fill):
        a = self.a; ds = DS(a)
        rd = lambda ks: ds.op(f'ds_read_b128 v[{48+4*(ks&3)}:{51+4*(ks&3)}], v{2+(ks&3)} offset:{slot + 1024*(ks>>2)}', ks)
        for ks in range(3): rd(ks)
        fill = list(fill); nf = len(fill); k = 0
        for ks in range(40):
            ds.need(ks)
            c = f'v[{acc}:{acc+15}]'
            a(f'v_mfma_f32_32x32x16_bf16 {c}, v[{72+4*ks}:{75+4*ks}], v[{48+4*(ks&3)}:{51+4*(ks&3)}], {c if ks else 0}')
            if ks + 3 < 40: rd(ks + 3)
            while k < nf and (ks >= 1) and k < (ks * nf + 36) // 37: a(fill[k]); k += 1
        while k < nf: a(fill[k]); k += 1
    def q_simple(self):
        a = self.a
        a(f'''
        s_lshl_b32 {t0}, {N}, 14
        s_add_u32 {sPA}, {t0}, {FA}
        s_lshl_b32 {t0}, {N}, 3
        s_add_u32 {t0}, {t0}, {G}          ; n*8+g
        s_mul_i32 {t1}, {t0}, {64*1280}
        s_add_u32 {sAD}, {t1}, {AB}
        s_add_u32 {sQB}, {sAD}, {32*1280}
        s_mul_i32 {t1}, {t0}, {4*HST}
        s_lshl_b32 {t2}, {FS}, 2
        s_add_u32 {t2}, {t2}, {W}
        s_lshl_b32 {t3}, {t2}, 9
        s_add_u32 {t1}, {t1}, {t3}
        s_add_u32 {sQH}, {t1}, {HB}
        s_mul_i32 {t0}, {t0}, 112
        s_add_u32 {t0}, {t0}, {t2}
        s_lshl_b32 {t0}, {t0}, 7
        s_add_u32 {sFH}, {t0}, {FH}
        ''')
        self.poll('v10', sPA)
        self.stampn(10)
        for o in self.a_dma(L_A, sAD) + self.a_dma(L_B, sQB): a(o)
        a('s_waitcnt vmcnt(10)\ns_barrier')
        self.stampn(34)
        self.q_unit(L_A, 16, [])
        a('s_waitcnt vmcnt(0)\ns_barrier')
        self.q_unit(L_B, 32, self.gelu_ops(16) + [f'buffer_store_dwordx4 v[64:67], v8, {WS_}, {sQH} offen sc1', f's_add_u32 {sQH}, {sQH}, {2*HST}'])
        for o in self.gelu_ops(32): a(o)
        a(f'buffer_store_dwordx4 v[64:67], v8, {WS_}, {sQH} offen sc1')
        self.stampn(42)
        a('s_barrier\ns_waitcnt vmcnt(0)')
        self.flag(sFH)
        self.stampn(18)
    def g_sub(self):
        a = self.a
        a('G_SUB:')
        a(f'''
        s_lshl_b32 {t0}, {sXH}, 3
        s_add_u32 {t0}, {t0}, {X}
        s_mul_i32 {t0}, {t0}, 112
        s_mul_i32 {t1}, {W}, 28
        s_add_u32 {t0}, {t0}, {t1}
        s_lshl_b32 {t0}, {t0}, 7
        s_add_u32 {sPH}, {t0}, {FH}
        s_lshl_b32 {t0}, {sXH}, 5
        s_add_u32 {t0}, {t0}, {T}          ; m*32+T
        s_mul_i32 {t1}, {t0}, {HST}
        s_mul_i32 {t2}, {W}, 14336
        s_add_u32 {t1}, {t1}, {t2}
        s_add_u32 {sHD}, {t1}, {HB}
        s_and_b32 {t0}, {t0}, 127          ; c*32+T
        s_lshl_b32 {t1}, {t0}, 3
        s_add_u32 {t1}, {t1}, {S}
        s_mul_i32 {t1}, {t1}, 2560
        s_mul_i32 {t2}, {W}, 640
        s_add_u32 {t1}, {t1}, {t2}
        s_add_u32 {sO1}, {t1}, {FB}
        s_add_u32 {sXA}, {t1}, {XB + SZ}
        s_mul_i32 {t1}, {t0}, 20480
        s_mul_i32 {t2}, {S}, 160
        s_add_u32 {sO2}, {t1}, {t2}
        s_lshl_b32 {t1}, {t0}, 2
        s_add_u32 {t1}, {t1}, {W}
        s_lshl_b32 {t1}, {t1}, 3
        s_add_u32 {t1}, {t1}, {S}
        s_lshl_b32 {t1}, {t1}, 7
        s_add_u32 {sPF}, {t1}, {FF}
        ''')
        self.stamp(50)
        self.poll('v9', sPH)
        self.stamp(51)
        for o in self.h_dma(sHD): a(o)
        a(f'''
        buffer_load_dwordx4 v[60:63], v1, {WS_}, {sXA} offen sc1
        s_waitcnt vmcnt(1)
        ''')
        self.stamp(52)
        ds = DS(a)
        rd = lambda ks: ds.op(f'ds_read_b128 v[{48+4*(ks%3)}:{51+4*(ks%3)}], v7 offset:{1024*ks}', ks)
        rd(0); rd(1)
        for ks in range(14):
            if ks == 12: a(f's_cmp_eq_u32 {W}, 3\ns_cbranch_scc1 G_RED')
            ds.need(ks)
            for j in range(5):
                c = f'v[{16+4*j}:{19+4*j}]'
                a(f'v_mfma_f32_16x16x32_bf16 {c}, {self.wd_reg(ks, j)}, v[{48+4*(ks%3)}:{51+4*(ks%3)}], {c if ks else 0}')
                if j == 0 and ks + 2 < 14: rd(ks + 2)
        a('G_RED:\ns_nop 7')
        self.stamp(53)
        a('s_barrier')
        for j in range(5): a(f'ds_write_b128 v11, v[{16+4*j}:{19+4*j}] offset:{64*j}')
        a('s_waitcnt lgkmcnt(0)\ns_barrier')
        for p in range(4):
            a(f'ds_read_b128 v[{16+8*p}:{19+8*p}], v12 offset:{5376*p}\nds_read_b128 v[{20+8*p}:{23+8*p}], v12 offset:{5376*p+16}')
        a('s_waitcnt lgkmcnt(4)')
        for k in range(4): a(f'v_pk_add_f32 v[{16+2*k}:{17+2*k}], v[{16+2*k}:{17+2*k}], v[{24+2*k}:{25+2*k}]')
        a('s_waitcnt lgkmcnt(0)')
        for k in range(4): a(f'v_pk_add_f32 v[{32+2*k}:{33+2*k}], v[{32+2*k}:{33+2*k}], v[{40+2*k}:{41+2*k}]')
        for k in range(4): a(f'v_pk_add_f32 v[{16+2*k}:{17+2*k}], v[{16+2*k}:{17+2*k}], v[{32+2*k}:{33+2*k}]')
        self.stamp(54)
        a(f'''
        s_mov_b32 exec_hi, 0xff
        s_cmp_ge_u32 {sXH}, 4
        s_cbranch_scc1 G_OUT
        ''')
        for k in range(4): a(f'v_cvt_pk_bf16_f32 v{64+k}, v{16+2*k}, v{17+2*k}')
        a(f'''
        buffer_store_dwordx4 v[64:67], v1, {WS_}, {sO1} offen sc1
        s_waitcnt vmcnt(0)
        ''')
        self.flag(sPF)
        a(f's_setpc_b64 {RET}\nG_OUT:\ns_waitcnt vmcnt(0)')
        for k in range(4):
            a(f'''
            v_lshlrev_b32 v32, 16, v{60+k}
            v_and_b32 v33, 0xffff0000, v{60+k}
            v_pk_add_f32 v[{16+2*k}:{17+2*k}], v[{16+2*k}:{17+2*k}], v[32:33]
            v_cvt_pk_bf16_f32 v{64+k}, v{16+2*k}, v{17+2*k}
            ''')
        a(f'''
        buffer_store_dwordx4 v[64:67], v13, {OUT_}, {sO2} offen
        s_mov_b32 exec_hi, -1
        s_setpc_b64 {RET}
        ''')

    def wd_all(self):
        for l in ('WD_I0', 'WD_C0', 'WD_C1', 'WD_C2', 'WD_C3'): self.a(f's_call_b64 {RET2}, {l}')
        self.a('s_barrier')
    def main(self):
        a = self.a
        self.prologue()
        if self.stop == 'start': a('s_waitcnt vmcnt(0)\ns_branch DONE')
        self.p0()
        self.stamp(56)
        a(f'''
        s_bitcmp1_b32 {ROLE}, 0
        s_cbranch_scc1 R_G1
        s_waitcnt vmcnt(0)
        ''')
        self.flag(t4)
        self.stamp(2)
        a('s_barrier')
        a(f'''
        s_bitcmp1_b32 {ROLE}, 2
        s_cbranch_scc1 R_LN
        ''')
        self.wd_all()
        a(f'''
        s_mov_b32 {sXH}, 0
        G2_LOOP:
        s_call_b64 {RET}, G_SUB
        s_add_u32 {sXH}, {sXH}, 1
        s_cmp_lt_u32 {sXH}, 8
        s_cbranch_scc1 G2_LOOP
        s_branch DONE
        ''')
        a('R_LN:')
        self.ln_setup()
        self.wd_all()
        self.stamp(3)
        a(f's_mov_b32 {N}, 0\nLN1_LOOP:')
        self.ln1()
        a(f'''
        s_add_u32 {N}, {N}, 1
        s_cmp_lt_u32 {N}, 4
        s_cbranch_scc1 LN1_LOOP
        s_mov_b32 {sXH}, 0
        LN2_LOOP:
        s_call_b64 {RET}, G_SUB
        s_sub_u32 {N}, {sXH}, 1
        s_add_u32 {sXH}, {sXH}, 1
        s_cmp_ge_u32 {N}, 4
        s_cbranch_scc1 LN2_SKIP
        ''')
        self.ln2()
        a(f'''
        LN2_SKIP:
        s_cmp_lt_u32 {sXH}, 8
        s_cbranch_scc1 LN2_LOOP
        s_branch DONE
        ''')
        a('R_G1:')
        self.w1_setup()
        self.w1_issue(16)
        a(f'''
        s_bitcmp1_b32 {ROLE}, 1
        s_cbranch_scc1 R_CONV
        s_waitcnt vmcnt(16)
        ''')
        self.flag(t4)
        self.stamp(2)
        self.w1_consume(0, 16); self.w1_issue(16); self.w1_consume(16, 16); self.w1_issue(8); self.w1_consume(32, 8)
        a('s_branch G1_MAIN\nR_CONV:\ns_waitcnt vmcnt(16)')
        self.flag(t4)
        self.stamp(2)
        self.hbuild()
        self.stamp(57)
        self.w1_consume(0, 16)
        self.stamp(3)
        self.conv()
        a('G1_MAIN:')
        self.wd_all()
        a(f's_mov_b32 {sC2}, {hex(f2u(-2.0*0.7978845608028654*1.4426950408889634*0.044715))}')
        a(f's_mov_b32 s101, {sC2}')
        a(f'v_mov_b32 v70, {hex(f2u(-2.0*0.7978845608028654*1.4426950408889634))}')
        a(f's_mov_b32 {N}, 0\nG1_LOOP:')
        self.q_simple()
        a(f'''
        s_sub_u32 {sXH}, {N}, 1
        s_cbranch_scc1 G1_NOG
        s_call_b64 {RET}, G_SUB
        G1_NOG:
        ''')
        self.stampn(26)
        a(f'''
        s_add_u32 {N}, {N}, 1
        s_cmp_lt_u32 {N}, 8
        s_cbranch_scc1 G1_LOOP
        s_mov_b32 {sXH}, 7
        s_call_b64 {RET}, G_SUB
        DONE:
        ''')
        self.stamp(62)
        if self.timers:
            a(f'''
            s_memrealtime {TM}
            s_waitcnt lgkmcnt(0)
            v_writelane_b32 v71, s96, 61
            s_lshl_b32 {t0}, s2, 2
            s_add_u32 {t0}, {t0}, {W}
            s_lshl_b32 {t0}, {t0}, 8
            s_add_u32 {t0}, {t0}, {TIM}
            v_lshlrev_b32 v16, 2, v0
            buffer_store_dword v71, v16, {WS_}, {t0} offen
            ''')
        if self.dbg and self.timers:
            a(f'''
            s_load_dwordx2 s[4:5], s[0:1], 88
            s_mov_b32 s6, 256
            s_cmp_eq_u32 s2, {self.dbg[0]}
            s_cbranch_scc0 NODBG
            s_cmp_eq_u32 {W}, 0
            s_cbranch_scc0 NODBG
            s_waitcnt lgkmcnt(0)
            ''')
            for i, l in enumerate(self.dbg[1]):
                a(f'v_readlane_b32 {t0}, v71, {l}\ns_nop 3\nv_writelane_b32 v16, {t0}, {i}')
            a('''
            v_lshlrev_b32 v17, 2, v0
            s_mov_b64 exec, 0xffff
            buffer_store_dword v16, v17, s[4:7], 0 offen
            s_mov_b64 exec, -1
            NODBG:
            ''')
        elif self.dbg:
            a(f'''
            s_memrealtime s[98:99]
            s_load_dwordx2 s[4:5], s[0:1], 88
            s_mov_b32 s6, 256
            s_cmp_eq_u32 {W}, 0
            s_cbranch_scc0 NODBG
            s_waitcnt lgkmcnt(0)
            s_not_b32 s97, s96
            s_not_b32 s99, s98
            v_writelane_b32 v16, s98, 0
            v_writelane_b32 v16, s97, 1
            v_writelane_b32 v16, s96, 2
            v_writelane_b32 v16, s99, 3
            s_and_b32 {t0}, s2, 3
            s_lshl_b32 {t0}, {t0}, 4
            v_lshlrev_b32 v17, 2, v0
            s_mov_b64 exec, 15
            buffer_atomic_umax v16, v17, s[4:7], {t0} offen
            s_mov_b64 exec, -1
            NODBG:
            ''')
        a(f'''
        s_or_b32 {t0}, s2, {W}
        s_cbranch_scc1 FIN
        ''')
        self.flag('0')
        a('''
        FIN:
        s_waitcnt vmcnt(0)
        EXIT:
        s_endpgm
        ''')
        self.g_sub(); self.ln_subs(); self.wd_subs()

def build(path, **kw):
    g = Gen(**kw); g.main()
    ref = open('interleave_layers__ssm_conv_h3__geglu_ffn__prompt.s.ref').read().split('\n')
    hdr = [l for l in ref if l.startswith(';') and '@launch' not in l]
    hdr = hdr[:14] + ['; @launch grid=(256,1,1) block=(256,1,1) lds=163840']
    txt = '\n'.join(hdr) + f'\n.amdgcn_target "amdgcn-amd-amdhsa--gfx950"\n.text\n.globl {KN}\n.p2align 8\n.type {KN},@function\n{KN}:\n'
    txt += g.a.text() + kern_desc(KN)
    open(path, 'w').write(txt)
    print(path, 'lines', txt.count('\n'), 'nops', g.a.nops)

if __name__ == '__main__':
    build('k_t.s', timers=True)
    build('k.s')
    build('k_d.s', timers=True, dbg=(8, [0,1,2,4,9,10,11,12,13,14,15,16,17,62,61,63]))
    build('k_f.s', dbg=True)
    build('k_e.s', timers=True, dbg=(224, [0,1,2,3,30,10,14,11,15,12,16,13,17,62,61,63]))
    build('k0_t.s', timers=True, stop_after='start')
```

```python
import re
KN = 'interleave_layers__ssm_conv_h3__geglu_ffn__prompt_kernel'

def regs_of(tok):
    tok = tok.strip()
    m = re.fullmatch(r'([vas])(\d+)', tok)
    if m: return {(m.group(1), int(m.group(2)))}
    m = re.fullmatch(r'([vas])\[(\d+):(\d+)\]', tok)
    if m: return {(m.group(1), r) for r in range(int(m.group(2)), int(m.group(3)) + 1)}
    if tok == 'vcc': return {('s', 'vcc')}
    if tok == 'exec': return {('s', 'exec')}
    if tok == 'm0': return {('s', 'm0')}
    return set()

TRANS = ('v_exp_f32', 'v_log_f32', 'v_rcp_f32', 'v_rsq_f32', 'v_sqrt_f32')

class I:
    def __init__(self, line):
        self.line = line
        s = line.split(';')[0].strip()
        self.label = s.endswith(':')
        self.op = ''
        self.dst = set(); self.src = set()
        if self.label or not s or s.startswith('.'): return
        p = s.split(None, 1)
        self.op = op = p[0]
        rest = p[1] if len(p) > 1 else ''
        ops = [x.strip() for x in re.split(r',(?![^\[]*\])', rest)] if rest else []
        if ops:
            last = ops[-1].split()
            ops[-1] = last[0] if last else ''
            self.mods = ' '.join(last[1:])
        else: self.mods = ''
        R = [regs_of(o) for o in ops]
        self.R = R
        self.valu = op.startswith('v_') and not op.startswith('v_mfma')
        self.mfma = op.startswith('v_mfma')
        self.vmem = op.startswith('buffer_') or op.startswith('global_')
        self.ds = op.startswith('ds_')
        self.salu = op.startswith('s_')
        self.dpp = ('_dpp' in op) or ('row_' in self.mods) or ('quad_perm' in self.mods)
        self.lds_dma = self.vmem and re.search(r'\blds\b', self.mods) is not None
        U = lambda l: set().union(*l) if l else set()
        if self.mfma:
            self.dst = R[0]; self.src = U(R[1:]); self.srcC = R[3] if len(R) > 3 else set()
            self.passes = 8 if '32x32' in op else 4
        elif self.valu:
            if op.startswith('v_permlane'):
                self.dst = R[0] | R[1]; self.src = R[0] | R[1]
            else:
                self.dst = R[0]; self.src = U(R[1:])
                if op.startswith('v_cndmask') and len(R) == 3: self.src |= {('s', 'vcc')}
                if op.startswith('v_fmac') or op.startswith('v_dot2c') or op.startswith('v_mac'): self.src |= R[0]
        elif self.vmem:
            if 'store' in op or self.lds_dma: self.src = U(R)
            elif 'atomic' in op: self.src = U(R); self.dst = R[0] if 'sc0' in self.mods else set()
            else: self.dst = R[0]; self.src = U(R[1:])
            if self.lds_dma: self.src |= {('s', 'm0')}
        elif self.ds:
            if 'read' in op: self.dst = R[0]; self.src = U(R[1:])
            else: self.src = U(R)
        elif self.salu:
            if op.startswith('s_cmp') or op.startswith('s_cbranch') or op in ('s_waitcnt', 's_nop', 's_barrier', 's_branch', 's_endpgm', 's_setprio', 's_sleep'):
                self.src = U(R)
            elif op == 's_setpc_b64': self.src = U(R)
            else:
                self.dst = R[0] if R else set(); self.src = U(R[1:])
    def ws(self):
        if self.label or not self.op: return 0
        if self.op == 's_nop':
            return int(self.line.split(';')[0].split()[1]) + 1
        return 1

def need(p, c):
    n = 0
    if not p.op or not c.op: return 0
    vd = {r for r in p.dst if r[0] in 'va'}
    sd = {r for r in p.dst if r[0] == 's'}
    if p.valu:
        isdot = p.op.startswith('v_dot')
        if c.mfma and vd & c.src: n = max(n, 3 if isdot else 2)
        if isdot and c.valu:
            if c.op == p.op:
                ab = (c.R[1] | c.R[2])
                if vd & ab: n = max(n, 3)
            elif vd & (c.src | c.dst): n = max(n, 3)
        if isdot and (c.vmem or c.ds) and vd & c.src: n = max(n, 3)
        if p.op.startswith(TRANS) and c.valu and vd & c.src: n = max(n, 1)
        if c.valu and c.dpp and vd & c.src: n = max(n, 2)
        if c.op.startswith('v_permlane') and vd & c.src: n = max(n, 2)
        if (c.op.startswith('v_readfirstlane') or c.op.startswith('v_readlane')) and vd & c.src: n = max(n, 1)
        if c.vmem and sd & c.src: n = max(n, 5)
        if c.valu and sd & c.src: n = max(n, 2)
        if ('op_sel' in p.mods and not p.op.startswith('v_pk') and not isdot) or 'sdwa' in p.op:
            if c.valu and vd & c.src: n = max(n, 1)
    if p.mfma:
        big = 12 if p.passes == 8 else 8
        if c.mfma:
            if vd & (c.R[1] | c.R[2]): n = max(n, big)
            if vd & c.srcC and not (c.srcC == p.dst and c.passes == p.passes): n = max(n, 10 if p.passes == 8 else 6)
        elif (c.valu and vd & (c.src | c.dst)) or ((c.vmem or c.ds) and vd & (c.src | c.dst)): n = max(n, big)
        if c.valu and p.srcC & c.dst: n = max(n, 7 if p.passes == 8 else 3)
    if p.salu and ('s', 'm0') in p.dst and c.vmem and c.lds_dma: n = max(n, 1)
    if p.vmem and 'store' in p.op and ('x4' in p.op or 'x3' in p.op):
        if (c.valu or c.mfma) and p.R[0] & c.dst: n = max(n, 2)
        elif (c.ds or c.vmem) and p.R[0] & c.dst: n = max(n, 1)
    return n

class Asm:
    def __init__(self):
        self.l = []; self.n = 0
    def __call__(self, s):
        for x in s.strip('\n').split('\n'):
            x = x.strip()
            if not x: continue
            self.l.append(x if x.endswith(':') else '    ' + x)
    def label(self, base):
        self.n += 1
        return f'{base}_{self.n}'
    def text(self, report=False):
        out = []; hist = []; nn = 0; t = 0; lastm = None
        for line in self.l:
            c = I(line)
            if c.op:
                tc = t
                if c.mfma and lastm is not None: tc = max(tc, lastm[1] + lastm[0].passes - 1)
                req = 0
                for p, tp in reversed(hist):
                    k = need(p, c)
                    d = tc - tp - p.ws()
                    if k > d: req = max(req, k - d + (tc - t))
                if req:
                    nop = I(f'    s_nop {req-1}')
                    out.append(nop.line + '   ; auto'); nn += 1
                    t += req; tc = max(tc, t)
                    if report: print('nop', req, 'before', line.strip())
                hist.append((c, tc)); t = tc + c.ws()
                if c.mfma: lastm = (c, tc)
                if c.op in ('s_branch', 's_setpc_b64', 's_endpgm'): hist = []; lastm = None
                hist = hist[-24:]
            elif c.label: lastm = None
            out.append(line)
        self.nops = nn
        return '\n'.join(out) + '\n'

def kern_desc(name, vgpr=512, agpr_off=256, sgpr=102):
    return f'''.section .rodata,"a"
.p2align 6
.amdhsa_kernel {name}
  .amdhsa_next_free_vgpr {vgpr}
  .amdhsa_next_free_sgpr {sgpr}
  .amdhsa_accum_offset {agpr_off}
  .amdhsa_group_segment_fixed_size 0
  .amdhsa_kernarg_size 104
  .amdhsa_user_sgpr_count 2
  .amdhsa_user_sgpr_kernarg_segment_ptr 1
  .amdhsa_system_sgpr_workgroup_id_x 1
.end_amdhsa_kernel
'''
```

```python
import sys, struct, re
from asm2 import *

def f2u(f): return struct.unpack('<I', struct.pack('<f', f))[0]

FP0 = 0x1000; FY = FP0 + 0x20000; FA = FY + 0x50000; FW = FA + 0x20000; FH = FW + 0x8000
FF = FH + 0xE0000 + 0x20000; TIM = FF + 0x100000
UT = 0x300000; YB = 0x600000; AB = 0x900000; XB = 0xE00000; FB = 0x13A0000; HB = 0x1700000; WF = 0x2500000
WS_SIZE = 0x2800000
assert TIM + 0x40000 <= UT
SZ = 0x280000
HST = 57344
L_A = 0; L_B = 40960; L_H = 81920; LHS = 15104; L_R = L_H + 4 * LHS
L_CW = 21248; L_U = 16640; L_W1 = 84992; L_X = 153600
assert L_R + 4 * 5376 <= 163840
K_, V_, SK_, H_, D_, Q_, WG_, WU_, WD_, OUT_, WS_ = [f's[{4*i+4}:{4*i+7}]' for i in range(11)]
TAG, W, X, II, T, S, G, FS = [f's{i}' for i in range(48, 56)]
WSB = 's[56:59]'; WSD = 's[60:63]'; W1_ = 's[64:67]'
N = 's68'; CNT = 's69'
sQB, sQH, sPF, sPH, sXH, sHD, sFH, sPA, sXA, sAD, sO1, sO2 = [f's{i}' for i in range(70, 82)]
sMA = 's82'
sMH = 's83'
sWDo = 's84'
sW1o = 's85'
t0, t1, t2, t3, t4, t5 = [f's{i}' for i in range(86, 92)]
RET = 's[92:93]'; RET2 = 's[94:95]'
TM = 's[96:97]'
ROLE = 's98'
WS3 = 's[28:31]'
sKSG = 's32'; sDUP = 's33'; sHinc = 's34'; sPFL = 's35'
sSEL = 's[4:5]'
sC1 = 's7'
sOUT = 's6'
LIMIT = 0x10000
NWC = 38

class DS:
    def __init__(self, a): self.a = a; self.q = []; self.done = set()
    def op(self, txt, tag=None):
        self.a(txt); self.q.append(tag)
    def need(self, tag):
        if tag in self.done: return
        i = self.q.index(tag)
        n = len(self.q) - 1 - i
        k = min(n, 15)
        self.a(f's_waitcnt lgkmcnt({k})')
        cut = len(self.q) - k
        for t_ in self.q[:cut]: self.done.add(t_)
        self.q = self.q[cut:]

class VM:
    def __init__(self, a, q=None): self.a = a; self.q = list(q or []); self.log = {}
    def op(self, txt, tag=None):
        self.a(txt); self.q.append(tag)
    def need(self, tag):
        if tag not in self.q: return
        i = len(self.q) - 1 - self.q[::-1].index(tag)
        n = len(self.q) - 1 - i
        self.log[tag] = n
        k = min(n, 63)
        self.a(f's_waitcnt vmcnt({k})')
        self.q = self.q[len(self.q) - k:] if k else []
    def after(self, tag):
        return None if tag not in self.q else self.q[::-1].index(tag)

class Gen:
    def __init__(self, timers=False, stop_after=None, dbg=False, **P):
        self.a = Asm(); self.timers = timers; self.stop = stop_after; self.dbg = dbg
        self.nst = 0; self.tv = 'v71'; self.P = P; self.ool = []
    def stamp(self, k):
        if not self.timers: return
        self.a(f'''
        s_memtime {TM}
        s_waitcnt lgkmcnt(0)
        v_writelane_b32 {self.tv}, s96, {k}
        ''')
    def stampn(self, base, mul=1):
        if not self.timers: return
        self.a(f'''
        s_memtime {TM}
        s_mov_b32 s3, m0
        s_mul_i32 s99, {N}, {mul}
        s_add_u32 m0, s99, {base}
        s_waitcnt lgkmcnt(0)
        v_writelane_b32 {self.tv}, s96, m0
        s_mov_b32 m0, s3
        ''')
    def poll(self, vaddr, soff, srd=WS_, exp=TAG):
        a = self.a; L = a.label('POLL'); D = a.label('PDONE')
        a(f'''
        s_mov_b32 {CNT}, {LIMIT}
        {L}:
        buffer_load_dword v14, {vaddr}, {srd}, {soff} offen sc1
        s_waitcnt vmcnt(0)
        v_cmp_ne_u32 vcc, {exp}, v14
        s_cbranch_vccz {D}
        s_sub_u32 {CNT}, {CNT}, 1
        s_cbranch_scc0 {L}
        {D}:
        ''')
    def spin(self, vaddr, soff):
        L = self.a.label('SPIN'); R = self.a.label('SRET')
        self.ool.append((L, R, vaddr, soff)); return L, R
    def check(self, lr):
        self.a(f'v_cmp_ne_u32 vcc, {TAG}, v14\ns_cbranch_vccnz {lr[0]}\n{lr[1]}:')
    def emit_ool(self):
        for L, R, va, so in self.ool:
            self.a(f'{L}:'); self.poll(va, so); self.a(f's_branch {R}')
    @staticmethod
    def acheck():
        return f'v_cmp_ne_u32 vcc, {TAG}, v14\ns_cmp_eq_u64 vcc, 0\ns_cselect_b32 s62, {WS_SIZE}, 0'
    @staticmethod
    def flag_s(soff, off=0):
        return f's_mov_b64 exec, 1\nbuffer_store_dword v15, off, {WS_}, {soff} {"offset:%d " % off if off else ""}sc1\ns_mov_b64 exec, -1'
    def flag(self, soff, off=0): self.a(self.flag_s(soff, off))

    def prologue(self):
        a = self.a
        a(f'''
        s_cmp_ge_u32 s2, 256
        s_cbranch_scc1 EXIT
        s_load_dwordx2 s[4:5], s[0:1], 8
        s_load_dwordx2 s[8:9], s[0:1], 16
        s_load_dwordx2 s[12:13], s[0:1], 24
        s_load_dwordx2 s[44:45], s[0:1], 96
        s_load_dwordx2 s[16:17], s[0:1], 32
        s_load_dwordx2 s[20:21], s[0:1], 40
        s_load_dwordx2 s[24:25], s[0:1], 0
        s_load_dwordx2 s[28:29], s[0:1], 56
        s_load_dwordx2 s[32:33], s[0:1], 64
        s_load_dwordx2 s[36:37], s[0:1], 72
        s_load_dwordx2 s[40:41], s[0:1], 80
        v_lshrrev_b32 v1, 6, v0
        v_and_b32 v0, 63, v0
        v_readfirstlane_b32 {W}, v1
        s_and_b32 {X}, s2, 7
        s_lshr_b32 {II}, s2, 3
        ''')
        if self.timers:
            a(f'''
            v_mov_b32 v71, 0
            s_memrealtime s[98:99]
            s_memtime {TM}
            s_waitcnt lgkmcnt(0)
            v_writelane_b32 v71, s96, 0
            v_writelane_b32 v71, s98, 63
            ''')
        sizes = [SZ, SZ, 5120, SZ, 1280, SZ, 640*1728*2, 640*1728*2, 640*1728*2, SZ, WS_SIZE]
        for i, z in enumerate(sizes):
            a(f's_mov_b32 s{4*i+6}, {z}\ns_mov_b32 s{4*i+7}, 0x00020000')
        a(f'''
        v_mul_u32_u24 v16, 205, v0
        v_lshrrev_b32 v16, 11, v16
        v_mul_u32_u24 v17, 10, v16
        v_sub_u32 v17, v0, v17
        s_lshr_b32 {t0}, {II}, 3
        s_add_u32 {t0}, {t0}, 1
        s_and_b32 {t0}, {t0}, 3
        s_lshl_b32 {t1}, {X}, 2
        s_add_u32 {T}, {t1}, {t0}
        s_and_b32 {S}, {II}, 7
        s_lshl_b32 {t0}, {T}, 6
        s_lshl_b32 {t1}, {W}, 4
        s_add_u32 {t0}, {t0}, {t1}
        v_lshlrev_b32 v18, 2, v16
        v_add_u32 v18, {t0}, v18           ; t
        s_mul_i32 {t2}, {S}, 160
        v_mul_u32_u24 v19, 1280, v18
        v_lshl_add_u32 v19, v17, 4, v19
        v_add_u32 v19, {t2}, v19
        v_subrev_u32 v20, 3840, v19
        v_cmp_eq_u32 vcc, 0, v18
        v_mov_b32 v21, 0x40000000
        s_mul_i32 {t2}, {S}, 640
        v_cndmask_b32 v20, v20, v21, vcc
        v_lshlrev_b32 v21, 6, v17
        v_add_u32 v21, {t2}, v21
        s_waitcnt lgkmcnt(0)
        s_load_dword {TAG}, s[44:45], 0
        s_mov_b32 exec_lo, -1
        s_mov_b32 exec_hi, 0xff
        ''')
        for r in range(3): a(f'buffer_load_dwordx4 v[{72+4*r}:{75+4*r}], v20, {K_}, 0 offen offset:{1280*r}')
        for r in range(4): a(f'buffer_load_dwordx4 v[{84+4*r}:{87+4*r}], v19, {K_}, 0 offen offset:{1280*r}')
        for r in range(4): a(f'buffer_load_dwordx4 v[{100+4*r}:{103+4*r}], v19, {V_}, 0 offen offset:{1280*r}')
        for r in range(4): a(f'buffer_load_dwordx4 v[{116+4*r}:{119+4*r}], v21, {SK_}, 0 offen offset:{16*r}')
        a('s_mov_b64 exec, -1')
        a(f'''
        s_and_b32 {t0}, {X}, 1
        s_lshl_b32 {t0}, {t0}, 2
        s_and_b32 {t1}, {II}, 3
        s_add_u32 {G}, {t0}, {t1}
        s_lshr_b32 {t0}, {X}, 1
        s_mul_i32 {t0}, {t0}, 7
        s_lshr_b32 {t1}, {II}, 2
        s_add_u32 {FS}, {t0}, {t1}
        s_mov_b32 {ROLE}, 0
        s_cmp_lt_u32 {FS}, 27
        s_cselect_b32 {ROLE}, 1, 0
        s_cmp_lt_u32 {II}, 20
        s_cselect_b32 {t0}, 2, 0
        s_or_b32 {ROLE}, {ROLE}, {t0}
        s_cmp_ge_u32 {II}, 28
        s_cselect_b32 {ROLE}, 4, {ROLE}
        s_mov_b32 s56, s44
        s_mov_b32 s57, s45
        s_mov_b32 s58, {WS_SIZE}
        s_mov_b32 s59, 0x00020000
        s_mov_b32 s60, s44
        s_mov_b32 s61, s45
        s_mov_b32 s62, 0
        s_mov_b32 s63, 0x00020000
        s_bitcmp1_b32 {W}, 0
        s_cselect_b32 s64, s32, s28
        s_cselect_b32 s65, s33, s29
        s_mov_b32 s66, {640*1728*2}
        s_mov_b32 s67, 0x00020000
        s_mul_i32 {sMA}, {W}, 10240
        s_mul_i32 {sMH}, {W}, {LHS}
        s_add_u32 {sMH}, {sMH}, {L_H}
        s_mov_b32 s28, s44
        s_mov_b32 s29, s45
        s_cmp_eq_u32 {W}, 3
        s_cselect_b32 s30, 0, {WS_SIZE}
        s_cselect_b32 {sDUP}, 1, 2
        s_lshl_b32 {sDUP}, {sDUP}, 11
        s_sub_u32 {sHinc}, {32*HST - 8192}, {sDUP}
        s_sub_u32 {t0}, {II}, 20
        s_lshl_b32 {sKSG}, {t0}, 3
        s_add_u32 {sKSG}, {sKSG}, {X}
        s_cmp_lt_u32 {sKSG}, 54
        s_cbranch_scc0 NOPREP
        s_or_b32 {ROLE}, {ROLE}, 8
        ''')
        for y in range(5):
            a(f'''
            v_add_u32 v22, {64*y}, v0
            v_mul_u32_u24 v23, 3277, v22
            v_lshrrev_b32 v23, 16, v23
            v_mul_u32_u24 v24, {1280 - 320}, v23
            v_lshl_add_u32 v{64+y}, v22, 4, v24
            ''')
        a(f'''
        s_mul_i32 {t0}, {sKSG}, {32*1280}
        s_mul_i32 {t1}, {W}, 320
        s_add_u32 {t0}, {t0}, {t1}
        s_add_u32 {t1}, {t0}, {16*1280}
        s_mov_b32 m0, {sMA}
        ''')
        for h in range(2):
            for y in range(5): a(f'buffer_load_dwordx4 v{64+y}, {WD_}, {t1 if h else t0} offen lds\ns_add_u32 m0, m0, 1024')
        a('NOPREP:')
        a(f'''
        v_lshlrev_b32 v1, 4, v0
        v_and_b32 v22, 31, v0              ; t
        v_lshrrev_b32 v23, 5, v0           ; h
        v_lshrrev_b32 v24, 3, v22
        v_mul_u32_u24 v24, 10240, v24
        v_and_b32 v25, 7, v22
        v_lshl_add_u32 v24, v25, 7, v24
        v_bfe_u32 v25, v22, 1, 3           ; swz
        v_xor_b32 v25, v25, v23
        ''')
        for q in range(4):
            a(f'v_xor_b32 v26, {2*q}, v25\nv_lshl_add_u32 v{2+q}, v26, 4, v24')
        a(f'''
        v_lshrrev_b32 v24, 3, v0
        s_lshl_b32 {t0}, {W}, 3
        v_add_u32 v24, {t0}, v24
        v_bfe_u32 v25, v24, 1, 3
        v_and_b32 v26, 7, v0
        v_xor_b32 v25, v25, v26
        v_mul_u32_u24 v24, 1280, v24
        v_lshl_add_u32 v6, v25, 4, v24
        v_add_u32 v7, {sMH}, v1
        v_lshrrev_b32 v24, 4, v22
        v_mul_u32_u24 v24, {HST}, v24
        v_lshl_add_u32 v24, v23, 8, v24
        v_and_b32 v25, 15, v0
        v_lshl_add_u32 v8, v25, 4, v24
        s_cmp_eq_u32 {W}, 3
        s_cselect_b32 {t0}, 23, 27
        v_min_u32 v9, {t0}, v0
        v_lshlrev_b32 v9, 7, v9
        v_and_b32 v24, 1, v0
        v_bfe_u32 v26, v0, 1, 1
        v_lshl_add_u32 v24, v26, 3, v24
        s_lshl_b32 {t0}, {G}, 2
        s_lshr_b32 {t1}, {W}, 1
        s_add_u32 {t0}, {t0}, {t1}
        s_lshl_b32 {t0}, {t0}, 2
        s_and_b32 {t1}, {W}, 1
        s_lshl_b32 {t1}, {t1}, 1
        s_add_u32 {t0}, {t0}, {t1}
        v_add_u32 v24, {t0}, v24
        v_lshlrev_b32 v10, 7, v24
        v_mul_u32_u24 v24, 336, v25
        v_lshrrev_b32 v26, 4, v0
        v_lshl_add_u32 v24, v26, 4, v24
        s_mul_i32 {t0}, {W}, 5376
        s_add_u32 {t0}, {t0}, {L_R}
        v_add_u32 v11, {t0}, v24
        s_lshl_b32 {t0}, {W}, 2
        v_add_u32 v24, {t0}, v16
        v_min_u32 v24, 15, v24
        v_mul_u32_u24 v26, 336, v24
        v_lshl_add_u32 v26, v17, 5, v26
        v_add_u32 v12, {L_R}, v26
        v_mul_u32_u24 v26, 1280, v24
        v_lshl_add_u32 v13, v17, 4, v26
        s_waitcnt lgkmcnt(0)
        s_mul_i32 {TAG}, {TAG}, 0x9E3779B1
        s_add_u32 {TAG}, {TAG}, 0x7F4A7C15
        v_mov_b32 v15, {TAG}
        v_mov_b32 v176, 0
        ''')

    def p0(self):
        a = self.a
        a(f'''
        s_mul_i32 {t0}, {X}, 20
        s_add_u32 {t0}, {t0}, {II}
        s_lshl_b32 {t0}, {t0}, 2
        s_add_u32 {t0}, {t0}, {W}
        s_lshl_b32 {t1}, {t0}, 12
        v_add_u32 v38, {t1}, v1
        v_subrev_u32 v39, 8, v38
        s_lshl_b32 {t1}, {t0}, 1
        v_mov_b32 v36, {t1}
        v_mov_b32 v40, 0
        v_mov_b32 v41, 0
        s_bitcmp1_b32 {ROLE}, 3
        s_cbranch_scc1 P0_PW
        s_waitcnt vmcnt(0)
        P0_PW:
        s_waitcnt vmcnt(10)
        ''')
        self.stamp(1)
        a(f'''
        s_bitcmp1_b32 {ROLE}, 1
        s_cbranch_scc0 P0_NOH
        s_mov_b64 exec, -2
        buffer_load_dwordx2 v[40:41], v39, {H_}, 0 offen
        s_mov_b64 exec, -1
        ''')
        for y in range(4):
            if y: a(f'buffer_load_dwordx2 v[{40+6*y}:{41+6*y}], v39, {H_}, 0 offen offset:{1024*y}')
            a(f'buffer_load_dwordx4 v[{42+6*y}:{45+6*y}], v38, {H_}, 0 offen offset:{1024*y}')
        a(f'''
        buffer_load_ushort v37, v36, {D_}, 0 offen
        P0_NOH:
        s_mov_b32 {t2}, 0x05040100
        s_mov_b32 {t3}, 0x07060302
        s_lshl_b32 {t0}, {W}, 1
        v_lshrrev_b32 v22, 1, v16
        v_add_u32 v22, {t0}, v22
        v_and_b32 v23, 7, v17
        v_xor_b32 v22, v22, v23
        v_lshlrev_b32 v22, 4, v22
        v_and_b32 v23, 1, v16
        v_lshl_add_u32 v22, v23, 3, v22
        v_lshl_add_u32 v22, v17, 10, v22
        v_add_u32 v22, {L_X}, v22
        s_mov_b32 exec_lo, -1
        s_mov_b32 exec_hi, 0xff
        ''')
        for j in range(8):
            d = j >> 1; sel = t3 if j & 1 else t2
            P = 132; U = 140 + 8 * (j & 1); VV = 156
            for s_ in range(1, 7):
                a(f'v_perm_b32 v{P+s_}, v{72+4*(s_-1)+d}, v{72+4*s_+d}, {sel}')
            for r in range(4):
                a(f'v_dot2_f32_bf16 v{U+r}, v{P+r+1}, v{117+2*j}, 0')
            for r in range(4):
                a(f'v_dot2_f32_bf16 v{U+r}, v{P+r+3}, v{116+2*j}, v{U+r}')
            for r in range(4):
                if j & 1: a(f'v_and_b32 v{VV+r}, 0xffff0000, v{100+4*r+d}')
                else: a(f'v_lshlrev_b32 v{VV+r}, 16, v{100+4*r+d}')
            a(f'''
            v_pk_mul_f32 v[{U}:{U+1}], v[{U}:{U+1}], v[{VV}:{VV+1}]
            v_pk_mul_f32 v[{U+2}:{U+3}], v[{U+2}:{U+3}], v[{VV+2}:{VV+3}]
            v_cvt_pk_bf16_f32 v{U+4}, v{U}, v{U+1}
            v_cvt_pk_bf16_f32 v{U+5}, v{U+2}, v{U+3}
            ds_write_b64 v22, v[{U+4}:{U+5}] offset:{128*j}
            ''')
        a(f'''
        s_mov_b64 exec, -1
        s_mul_i32 {t0}, {W}, 20
        v_lshrrev_b32 v22, 3, v0
        v_add_u32 v22, {t0}, v22
        v_and_b32 v23, 7, v0
        ''')
        for y in range(3):
            a(f'''
            v_add_u32 v24, {8*y}, v22
            v_bfe_u32 v25, v24, 3, 3
            v_xor_b32 v25, v25, v23
            v_lshlrev_b32 v25, 4, v25
            v_lshl_add_u32 v25, v24, 7, v25
            v_add_u32 v{26+y}, {L_X}, v25
            ''')
        a(f'''
        s_mul_i32 {t0}, {S}, 80
        v_add_u32 v22, {t0}, v22
        v_lshlrev_b32 v22, 12, v22
        v_lshl_add_u32 v22, v23, 4, v22
        s_lshl_b32 {t0}, {T}, 7
        s_add_u32 {t0}, {t0}, {UT}
        s_add_u32 {t1}, {t0}, 0x8000
        s_add_u32 {t2}, {t0}, 0x10000
        s_waitcnt lgkmcnt(0)
        ''')
        self.stamp(55)
        a(f'''
        s_barrier
        ds_read_b128 v[72:75], v26
        ds_read_b128 v[76:79], v27
        s_mov_b32 exec_hi, 0
        ds_read_b128 v[80:83], v28
        s_mov_b32 exec_hi, -1
        s_waitcnt lgkmcnt(2)
        buffer_store_dwordx4 v[72:75], v22, {WS_}, {t0} offen sc1
        s_waitcnt lgkmcnt(1)
        buffer_store_dwordx4 v[76:79], v22, {WS_}, {t1} offen sc1
        s_waitcnt lgkmcnt(0)
        s_mov_b32 exec_hi, 0
        buffer_store_dwordx4 v[80:83], v22, {WS_}, {t2} offen sc1
        s_mov_b32 exec_hi, -1
        s_lshl_b32 {t4}, {S}, 2
        s_add_u32 {t4}, {t4}, {W}
        s_lshl_b32 {t4}, {t4}, 5
        s_add_u32 {t4}, {t4}, {T}
        s_lshl_b32 {t4}, {t4}, 7
        s_add_u32 {t4}, {t4}, {FP0}
        ''')

    def w1_setup(self):
        self.a(f'''
        v_lshrrev_b32 v66, 3, v0
        v_bfe_u32 v67, v0, 4, 1
        v_lshlrev_b32 v67, 1, v67
        s_and_b32 {t0}, {W}, 1
        s_lshl_b32 {t0}, {t0}, 2
        v_or_b32 v67, {t0}, v67
        v_and_b32 v68, 7, v0
        v_xor_b32 v67, v67, v68
        v_mul_u32_u24 v66, 3456, v66
        v_lshl_add_u32 v64, v67, 4, v66
        s_lshr_b32 {t0}, {W}, 1
        s_mul_i32 {t0}, {t0}, {8*3456}
        s_lshl_b32 {sW1o}, {FS}, 7
        s_add_u32 {sW1o}, {sW1o}, {t0}
        v_lshrrev_b32 v66, 4, v0
        v_and_b32 v67, 1, v66              ; mat
        v_lshrrev_b32 v66, 1, v66          ; h
        v_lshlrev_b32 v66, 11, v66
        v_lshl_add_u32 v66, v67, 10, v66
        v_bfe_u32 v68, v0, 2, 2            ; r
        v_lshl_add_u32 v66, v68, 7, v66
        v_lshrrev_b32 v68, 1, v68
        v_lshl_add_u32 v68, v67, 1, v68    ; sigma
        v_xor_b32 v68, {W}, v68
        v_lshl_add_u32 v66, v68, 5, v66
        v_and_b32 v68, 3, v0
        v_lshl_add_u32 v66, v68, 3, v66
        v_add_u32 v65, {L_W1}, v66
        ''')
    def w1_issue(self, nks):
        a = self.a
        a(f's_lshl_b32 {t0}, {W}, 10\ns_add_u32 m0, {t0}, {L_W1}')
        for i in range(nks):
            a(f'''
            buffer_load_dwordx4 v64, {W1_}, {sW1o} offen lds
            s_add_u32 m0, m0, 4096
            s_add_u32 {sW1o}, {sW1o}, {16*3456}
            ''')
    def w1_consume(self, ks0, nks):
        a = self.a
        a('s_waitcnt vmcnt(0)\ns_barrier')
        for i in range(nks):
            r = 72 + 4 * (ks0 + i)
            a(f'ds_read_b64_tr_b16 v[{r}:{r+1}], v65 offset:{4096*i}')
            a(f'ds_read_b64_tr_b16 v[{r+2}:{r+3}], v65 offset:{4096*i+512}')
        a('s_waitcnt lgkmcnt(0)\ns_barrier')
    @staticmethod
    def wd_freg(f):
        if f < 6: return f'v[{232+4*f}:{235+4*f}]'
        p = [0, 1, 2, 3, 4, 6, 5, 7][(f - 6) >> 3]; k = (f - 6) & 7
        r = 4 * (8*k + p) if k < 4 else 128 + 4 * (8*(k-4) - p + 7)
        return f'a[{r}:{r+3}]'
    def wd_reg(self, ks, j): return self.wd_freg(ks * 5 + j)
    def wd_prep(self):
        a = self.a
        a(f'''
        v_lshrrev_b32 v70, 5, v0
        v_bfe_u32 v14, v0, 4, 1
        v_lshl_add_u32 v70, v70, 2, v14
        v_bfe_u32 v14, v0, 2, 2
        v_lshl_add_u32 v70, v70, 2, v14
        v_mul_u32_u24 v70, 320, v70
        v_and_b32 v14, 3, v0
        v_lshl_add_u32 v70, v14, 3, v70
        v_add_u32 v70, {sMA}, v70
        s_mul_i32 {t0}, {W}, 108
        s_add_u32 {t0}, {t0}, {sKSG}
        s_mul_i32 {t0}, {t0}, 5120
        s_add_u32 {t0}, {t0}, {WF}
        s_lshl_b32 {t5}, {sKSG}, 2
        s_add_u32 {t5}, {t5}, {W}
        s_lshl_b32 {t5}, {t5}, 7
        s_add_u32 {t5}, {t5}, {FW}
        ''')
        ds = DS(a)
        for q in range(10):
            for e in range(2):
                ds.op(f'ds_read_b64_tr_b16 v[{72+4*q+2*e}:{73+4*q+2*e}], v70 offset:{160*(q//5) + 32*(q%5) + 2560*e}', (q, e))
        for q in range(10):
            ds.need((q, 1))
            j = q % 5
            if j == 4: a(f's_add_u32 {t0}, {t0}, 4096')
            a(f'buffer_store_dwordx4 v[{72+4*q}:{75+4*q}], v1, {WS_}, {t0} offen offset:{1024*(j&3)} sc1')
            if q == 4: a(f's_add_u32 {t0}, {t0}, {54*5120 - 4096}')
    def wd_init(self):
        self.a(f'''
        s_mul_i32 {t0}, {W}, 14
        v_add_u32 v70, {t0}, v0
        s_add_u32 {t1}, {t0}, 13
        s_min_u32 {t1}, {t1}, 53
        v_min_u32 v70, {t1}, v70
        v_lshlrev_b32 v70, 9, v70
        s_lshr_b32 {t3}, {S}, 1
        s_lshl_b32 {t3}, {t3}, 7
        s_add_u32 {t3}, {t3}, {FW}
        s_mul_i32 {sWDo}, {S}, 54
        s_add_u32 {sWDo}, {sWDo}, {t0}
        s_mul_i32 {sWDo}, {sWDo}, 5120
        s_add_u32 {sWDo}, {sWDo}, {WF}
        ''')
    def wd_ld(self, f):
        s_ = f'buffer_load_dwordx4 {self.wd_freg(f)}, v1, {WS3 if f >= 60 else WS_}, {sWDo} offen offset:{1024*(f&3)} sc1'
        if f & 3 == 3: s_ += f'\ns_add_u32 {sWDo}, {sWDo}, 4096'
        return s_
    def wd_subs(self):
        a = self.a
        a('WD_ALL:')
        self.wd_init(); self.poll('v70', t3)
        for f in range(70): a(self.wd_ld(f))
        a(f's_sub_u32 {sWDo}, {sWDo}, {4096 * (70 // 4 - NWC // 4)}\ns_setpc_b64 {RET2}')

    def hbuild(self):
        a = self.a
        a(f'''
        s_mul_i32 {t0}, {W}, {L_CW}
        s_add_u32 {t1}, {t0}, 4080
        v_sub_u32 v38, {t1}, v1
        v_subrev_u32 v38, 3072, v38
        s_mov_b32 {t2}, 0xffff
        v_mov_b32 v16, 0
        v_mov_b32 v17, 0
        v_mov_b32 v18, 0
        v_mov_b32 v19, 0
        v_lshrrev_b32 v39, 1, v1
        s_add_u32 {t1}, {t0}, {L_U}
        v_add_u32 v39, {t1}, v39
        ds_write_b64 v39, v[16:17]
        v_bfe_u32 v39, v0, 1, 2
        v_mul_u32_u24 v39, 4160, v39
        v_and_b32 v36, 1, v0
        v_lshl_add_u32 v39, v36, 4, v39
        s_add_u32 {t1}, {t0}, 4096
        v_add_u32 v39, {t1}, v39
        ds_write_b128 v39, v[16:19]
        ''')
        for y in range(4):
            D = lambda k: f'v{42+6*y+k}'
            for s_ in range(4):
                r = 16 + 4 * s_
                for o in range(4):
                    if s_ == 0: a(f'v_alignbit_b32 v{r+o}, {D(3-o)}, {D(3-o)}, 16')
                    if s_ == 1: a(f'v_bfi_b32 v{r+o}, {t2}, {D(3-o)}, {D(2-o)}')
                    if s_ == 2: a(f'v_alignbit_b32 v{r+o}, {D(2-o)}, {D(2-o)}, 16')
                    if s_ == 3: a(f'v_bfi_b32 v{r+o}, {t2}, {D(2-o)}, {D(1-o)}')
                a(f'ds_write_b128 v38, v[{r}:{r+3}] offset:{4160*s_ + 3072 - 1024*y}')
        a(f'''
        v_and_b32 v16, 15, v0              ; m / n
        v_lshrrev_b32 v17, 4, v0           ; q
        v_lshrrev_b32 v18, 3, v16
        v_add_u32 v18, 2, v18
        v_cmp_eq_u32 vcc, v17, v18
        v_and_b32 v19, 1, v0
        v_lshlrev_b32 v19, 4, v19
        v_lshlrev_b32 v37, v19, v37
        v_cndmask_b32 v37, 0, v37, vcc
        v_bfe_u32 v19, v0, 1, 2
        ''')
        for d in range(4):
            a(f'v_cmp_eq_u32 vcc, {d}, v19\ns_nop 1\nv_cndmask_b32 v{32+d}, 0, v37, vcc')
        a(f'''
        v_sub_u32 v18, 3, v16
        v_and_b32 v18, 3, v18
        v_mul_u32_u24 v18, 4160, v18
        v_lshl_add_u32 v18, v17, 4, v18
        v_lshrrev_b32 v19, 2, v16
        v_lshlrev_b32 v19, 3, v19
        v_sub_u32 v18, v18, v19
        s_add_u32 {t1}, {t0}, 24
        v_add_u32 v36, {t1}, v18
        v_lshlrev_b32 v18, 5, v16
        v_lshl_add_u32 v18, v17, 4, v18
        s_add_u32 {t1}, {t0}, {L_U + 32}
        v_add_u32 v39, {t1}, v18
        s_lshl_b32 {t1}, {W}, 2
        v_add_u32 v18, {t1}, v17
        v_xor_b32 v18, v18, v16
        v_lshlrev_b32 v18, 3, v18
        v_lshl_add_u32 v18, v16, 7, v18
        v_add_u32 v66, {L_X}, v18
        v_bfe_u32 v18, v0, 1, 1
        v_lshl_add_u32 v18, v17, 1, v18
        s_lshl_b32 {t1}, {W}, 3
        v_add_u32 v18, {t1}, v18
        v_bfe_u32 v19, v0, 2, 2
        v_and_b32 v20, 1, v0
        v_lshl_add_u32 v19, v19, 2, v20
        v_and_b32 v20, 15, v18
        v_xor_b32 v19, v19, v20
        v_lshlrev_b32 v19, 3, v19
        v_lshl_add_u32 v19, v18, 7, v19
        v_add_u32 v67, {L_X}, v19
        v_xor_b32 v69, 16, v67
        v_lshrrev_b32 v18, 3, v0
        v_mul_u32_u24 v18, 20480, v18
        v_and_b32 v19, 7, v0
        v_lshl_add_u32 v68, v19, 4, v18
        v_and_b32 v37, 31, v0
        v_lshlrev_b32 v37, 7, v37
        s_waitcnt lgkmcnt(0)
        ''')
        for b in range(32):
            a(f'ds_read_b64 a[{4*b}:{4*b+1}], v36 offset:{64*(63-b)}')
            a(f'ds_read_b64 a[{4*b+2}:{4*b+3}], v36 offset:{64*(63-b)+8}')

    def conv(self):
        a = self.a
        a(f'''
        s_mul_i32 {t0}, {II}, 52
        s_lshr_b32 {t0}, {t0}, 8           ; i/5
        s_lshl_b32 {t1}, {X}, 2
        s_add_u32 {t0}, {t0}, {t1}
        s_lshl_b32 {t0}, {t0}, 12
        s_add_u32 {t0}, {t0}, {FP0}
        s_mul_i32 {t1}, {X}, 20
        s_add_u32 {t1}, {t1}, {II}         ; cw
        s_lshl_b32 {t2}, {t1}, 2
        s_add_u32 {t2}, {t2}, {W}
        s_lshl_b32 {t2}, {t2}, 12
        s_add_u32 {t2}, {t2}, {UT}
        s_mul_i32 {t3}, {W}, {L_CW}
        s_add_u32 m0, {t3}, {L_U + 512}
        s_mul_i32 {t3}, {W}, 1280
        s_add_u32 {t3}, {t3}, {t1}
        s_lshl_b32 {t3}, {t3}, 7
        s_add_u32 {sO1}, {t3}, {YB}
        s_mul_i32 {t3}, {W}, 160
        s_add_u32 {t3}, {t3}, {t1}
        s_lshl_b32 {t3}, {t3}, 7
        s_add_u32 {sO2}, {t3}, {FY}
        ''')
        self.poll('v37', t0)
        self.stamp(4)
        for y in range(4):
            a(f'buffer_load_dwordx4 v1, {WS_}, {t2} offen offset:{1024*y} sc1 lds')
        self.wd_init()
        self.a_init()
        a('s_waitcnt vmcnt(0)')
        self.stamp(5)
        ds = DS(a); vm = VM(a)
        Areg = {b: f'a[{4*b}:{4*b+3}]' for b in range(32)}
        Breg = {e: f'a[{128+4*(e+7)}:{131+4*(e+7)}]' for e in range(-7, 25)}
        def rng(r):
            m = re.fullmatch(r'([av])\[(\d+):(\d+)\]', r); return m.group(1), int(m.group(2))
        def ldA(b):
            k, r = rng(Areg[b])
            return [(f'ds_read_b64 {k}[{r}:{r+1}], v36 offset:{64*(63-b)}', None),
                    (f'ds_read_b64 {k}[{r+2}:{r+3}], v36 offset:{64*(63-b)+8}', ('A', b))]
        def ldB(e): return [(f'ds_read_b128 {Breg[e]}, v39 offset:{64*(e+7)}', ('B', e))]
        for b in range(32): ds.done.add(('A', b))
        acc = {0: 16, 1: 20, 2: 24, 3: 28, 4: 16, 5: 20, 6: 48, 7: 52}
        def mf(j, b, e):
            if b is not None: ds.need(('A', b))
            ds.need(('B', e))
            c = f'v[{acc[j]}:{acc[j]+3}]'
            if b is None: a(f'v_mfma_f32_16x16x32_bf16 {c}, v[32:35], {Breg[e]}, 0')
            else: a(f'v_mfma_f32_16x16x32_bf16 {c}, {Areg[b]}, {Breg[e]}, {c}')
        def run(mfs, fill, per=1):
            fill = list(fill)
            for m_ in mfs:
                mf(*m_)
                for _ in range(per):
                    if fill: fill.pop(0)()
            while fill: fill.pop(0)()
        L = lambda items: [(lambda it=it: ds.op(*it)) for it in items]
        nop = lambda: None
        def epi(c, tiles, tmp):
            F = []
            buf = (c & 1) * 4096
            for jj, j in enumerate(tiles):
                r = acc[j]
                F.append(lambda r=r, jj=jj: a(f'v_cvt_pk_bf16_f32 v{tmp+2*jj}, v{r}, v{r+1}\nv_cvt_pk_bf16_f32 v{tmp+2*jj+1}, v{r+2}, v{r+3}'))
                F.append(lambda jj=jj: ds.op(f'ds_write_b64 v66, v[{tmp+2*jj}:{tmp+2*jj+1}] offset:{buf + 2048*jj}', ('W', c, jj)))
            return F
        def epi2(c, tmp):
            buf = (c & 1) * 4096
            F = [lambda: ds.op(f'ds_read_b64_tr_b16 v[{tmp}:{tmp+1}], v67 offset:{buf}', None),
                 lambda: ds.op(f'ds_read_b64_tr_b16 v[{tmp+2}:{tmp+3}], v69 offset:{buf}', ('R', c))]
            return F
        def ystore(c, tmp):
            def f():
                ds.need(('R', c))
                vm.op(f'buffer_store_dwordx4 v[{tmp}:{tmp+3}], v68, {WS_}, {sO1} offen sc1\ns_add_u32 {sO1}, {sO1}, {32*20480}', ('Y', c))
            return f
        def bar(tag):
            def f():
                ds.need(tag); a('s_barrier')
            return f
        def yflag(c):
            def f():
                vm.need(('Y', c)); vm.op(self.flag_s(sO2) + f'\ns_add_u32 {sO2}, {sO2}, {640*128}')
            return f
        V = lambda items: [(lambda it=it: vm.op(*it)) for it in items]
        wdl = lambda f0, f1: V([(self.wd_ld(f), ('WD', f)) for f in range(f0, f1)])
        def mix(x, y):
            o = []
            while x or y:
                if x: o.append(x.pop(0))
                if y: o.append(y.pop(0))
            return o
        def w1i(n):
            F = [lambda: a(f's_lshl_b32 {t0}, {W}, 10\ns_add_u32 m0, {t0}, {L_W1}')]
            for i in range(n):
                F.append(lambda: vm.op(f'buffer_load_dwordx4 v64, {W1_}, {sW1o} offen lds\ns_add_u32 m0, m0, 4096\ns_add_u32 {sW1o}, {sW1o}, {16*3456}', 'W1'))
            return F
        def w1c(ks0, n):
            F = []
            for i in range(n):
                r = 72 + 4 * (ks0 + i)
                o = 4096 * ((ks0 + i) & 15)
                F += L([(f'ds_read_b64_tr_b16 v[{r}:{r+1}], v65 offset:{o}', None),
                        (f'ds_read_b64_tr_b16 v[{r+2}:{r+3}], v65 offset:{o+512}', ('W1', ks0 + i))])
            return F
        l0 = []
        for r in range(8): l0 += ldB(-r) + ldB(8 - r)
        l1 = []
        for r in range(8): l1 += ldB(16 - r) + ldB(24 - r)
        for it in l0[:4]: ds.op(*it)
        m0_ = [(0, None, 0), (1, None, 8)]
        for r in range(8): m0_ += [(0, r, -r), (1, r, 8 - r), (1, 8 + r, -r)]
        run(m0_, L(l0[4:] + l1))
        self.stamp(6)
        slots = [f'v[{200+4*k}:{203+4*k}]' for k in range(8)]
        def extras(r, sl):
            it = []
            for k in range(4):
                Areg[8*(4+k) + r] = sl[k]; Breg[8*(4+k) - r] = sl[4+k]
            for k in range(4): it += ldB(8*(4+k) - r) + ldA(8*(4+k) + r)
            return it
        m1 = [(2, None, 16), (3, None, 24)]
        for r in range(8):
            for j in (2, 3):
                for be in range(j + 1): m1.append((j, 8*be + r, 8*(j-be) - r))
        F = [nop, nop] + epi(0, (0, 1), 56) + [nop, nop, bar(('W', 0, 1))] + epi2(0, 60) + [nop]*4 + [ystore(0, 60)]
        F += V([(f'buffer_load_dword v14, v70, {WS_}, {t3} offen sc1', 'FW')])
        F += L(extras(0, slots)) + w1c(16, 16)
        run(m1, F)
        self.stamp(7)
        slots1 = [f'v[{232+4*k}:{235+4*k}]' for k in range(6)] + ['v[40:43]', 'v[44:47]']
        for r in range(8):
            mm = []
            prs = [(be, ga) for be in range(8) for ga in range(8) if 4 <= be + ga <= 7]
            prs.sort(key=lambda p: max(p))
            if r == 0:
                mm += [(j, None, 8*j) for j in (4, 5, 6, 7)]
            mm += [(be + ga, 8*be + r, 8*ga - r) for be, ga in prs]
            F = []
            if r == 0: F += [nop, nop] + epi(1, (2, 3), 56) + [nop, nop, bar(('W', 1, 1))] + epi2(1, 60) + [nop]*2 + [yflag(0), ystore(1, 60)]
            if r < 7:
                if r == 0: sl = slots1
                else:
                    p = r - 1
                    sl = [Areg[8*k + p] for k in range(4)] + [Breg[8*k - p] for k in range(4)]
                F += L(extras(r + 1, sl))
            if r == 0: F += w1i(8)[:5]
            if r == 1: F = mix(F, w1i(8)[5:])
            if r == 2:
                def fw():
                    vm.need('FW'); self.check(self.spin('v70', t3))
                F = [fw] + mix(F, wdl(0, 6)) + [yflag(1)]
            if r == 3: F = mix(F, wdl(6, 14))
            if r == 4: F = [lambda: (vm.need('W1'), a('s_barrier'))] + mix(F + w1c(32, 3), wdl(14, 22))
            if r == 5: F = mix(F + w1c(35, 3), wdl(22, 26) + V([(f'buffer_load_dword v14, v10, {WS_}, {sPA} offen sc1', 'PA')]) + wdl(26, 30))
            if r == 6: F = mix(F + w1c(38, 2), wdl(30, NWC))
            if r == 7:
                def ac():
                    vm.need('PA'); a(self.acheck()); a('s_waitcnt lgkmcnt(0)\ns_barrier'); ds.done |= set(ds.q); ds.q = []
                F = [ac] + V([(o, 'A') for o in self.a_dma(L_A, sAD, WSD)] + [(o, 'B') for o in self.a_dma(L_B, sQB, WSD)])
            run(mm, F)
        self.stamp(8)
        for f in epi(2, (4, 5), 56) + epi(3, (6, 7), 60): f()
        bar(('W', 3, 1))()
        for f in epi2(2, 56) + epi2(3, 60) + [ystore(2, 56), ystore(3, 60)]: f()
        self.conv_q = vm.q
        self.stamp(9)

    def ln_setup(self):
        a = self.a
        a(f'''
        s_lshl_b32 {t0}, {X}, 2
        s_add_u32 {G}, {t0}, {II}
        s_sub_u32 {G}, {G}, 28             ; TL
        v_lshrrev_b32 v16, 4, v0
        s_lshl_b32 {t0}, {W}, 2
        v_add_u32 v21, {t0}, v16
        v_and_b32 v17, 15, v0              ; kappa
        v_mul_u32_u24 v18, 1280, v21
        v_lshl_add_u32 v8, v17, 4, v18
        s_mul_i32 {t0}, {G}, 20480
        ''')
        for c in range(4):
            for u in range(5): a(f'buffer_load_dwordx4 v[{152+20*c+4*u}:{155+20*c+4*u}], v8, {Q_}, {t0} offen offset:{256*u}')
            if c < 3: a(f's_add_u32 {t0}, {t0}, {32*20480}')
        a('v_mul_u32_u24 v18, 160, v21')
        for u in range(5):
            a(f'''
            v_add_u32 v19, {16*u}, v17
            v_mul_u32_u24 v20, 205, v19
            v_lshrrev_b32 v20, 11, v20
            v_mul_u32_u24 v20, {2560-160}, v20
            v_lshl_add_u32 v20, v19, 4, v20
            v_add_u32 v{2+u}, v20, v18
            ''')
        a(f'''
        v_lshrrev_b32 v18, 2, v17
        v_lshlrev_b32 v18, 10, v18
        v_and_b32 v19, 3, v0
        v_lshl_add_u32 v18, v19, 6, v18
        v_lshl_add_u32 v18, v16, 4, v18
        s_and_b32 {t0}, {W}, 1
        s_lshl_b32 {t0}, {t0}, 8
        s_lshr_b32 {t1}, {W}, 1
        s_lshl_b32 {t1}, {t1}, 3
        s_add_u32 {t0}, {t0}, {t1}
        v_add_u32 v10, {t0}, v18
        v_bfe_u32 v18, v0, 2, 2
        v_lshrrev_b32 v20, 5, v0
        v_lshl_add_u32 v18, v18, 1, v20
        v_and_b32 v20, 1, v16
        v_lshl_add_u32 v19, v20, 2, v19
        v_lshlrev_b32 v19, 4, v19
        v_lshl_add_u32 v68, v18, 7, v19
        v_min_u32 v18, 39, v0
        s_mul_i32 {t0}, {W}, 40
        v_add_u32 v18, {t0}, v18
        v_lshlrev_b32 v69, 7, v18
        ''')
    def ln_setup2(self):
        self.a(f'''
        v_bfe_u32 v18, v1, 4, 3
        s_lshl_b32 {t0}, {W}, 3
        v_add_u32 v18, {t0}, v18
        v_lshlrev_b32 v176, 7, v18
        v_subrev_u32 v10, 81920, v10
        s_mov_b32 {sPFL}, {FF}
        ''')
    XP = staticmethod(lambda k: f'v[{72+2*k}:{73+2*k}]')
    NP = staticmethod(lambda k: f'v[{112+2*k}:{113+2*k}]')
    def st_acc(self, k):
        P = self.XP(k); r = 2 * (k & 1)
        if k < 2: return [f'v_pk_mul_f32 v[{60+r}:{61+r}], {P}, {P}'] + ([f'v_pk_add_f32 v[56:57], {self.XP(0)}, {P}'] if k else [])
        if k == 2: return [f'v_pk_fma_f32 v[60:61], {P}, {P}, v[60:61]']
        if k == 3: return [f'v_pk_fma_f32 v[62:63], {P}, {P}, v[62:63]', f'v_pk_add_f32 v[58:59], {self.XP(2)}, {P}']
        return [f'v_pk_fma_f32 v[{60+r}:{61+r}], {P}, {P}, v[{60+r}:{61+r}]', f'v_pk_add_f32 v[{56+r}:{57+r}], v[{56+r}:{57+r}], {P}']
    def st_fin(self, fill=(), rr=58, mr=56):
        a = self.a; fill = list(fill)
        def gap(n):
            for _ in range(n):
                if fill: a(fill.pop(0))
        a('v_pk_add_f32 v[56:57], v[56:57], v[58:59]\nv_pk_add_f32 v[60:61], v[60:61], v[62:63]')
        gap(1)
        a('v_add_f32 v56, v56, v57\nv_add_f32 v60, v60, v61')
        for r in (8, 4, 2, 1):
            gap(2)
            a(f'v_add_f32_dpp v56, v56, v56 row_ror:{r} row_mask:0xf bank_mask:0xf\nv_add_f32_dpp v60, v60, v60 row_ror:{r} row_mask:0xf bank_mask:0xf')
        gap(1)
        a(f'v_mul_f32 v56, {hex(f2u(1/640))}, v56'); gap(2)
        a('v_mul_f32 v57, v56, v56'); gap(2)
        a(f'v_fma_f32 v57, v60, {sC1}, -v57'); gap(2)
        a('v_max_f32 v57, 0, v57'); gap(2)
        a(f'v_add_f32 v57, {hex(f2u(1e-5))}, v57'); gap(2)
        a(f'v_rsq_f32 v{rr}, v57'); gap(4)
        a(f'v_mul_f32 v{mr}, v56, v{rr}'); gap(len(fill))
    def unp(self, dst, src): return [f'v_lshlrev_b32 v{dst}, 16, v{src}', f'v_and_b32 v{dst+1}, 0xffff0000, v{src}']
    def nrm(self, dst, k, rr=58, mr=56): return f'v_pk_fma_f32 {dst}, {self.XP(k)}, v[{rr}:{rr+1}], v[{mr}:{mr+1}] op_sel_hi:[1,0,0] neg_lo:[0,0,1] neg_hi:[0,0,1]'
    def ln_tail(self, vm, extra=()):
        a = self.a
        F = []
        for k in range(20):
            F.append(f'v_cvt_pk_bf16_f32 v{16+k}, v{72+2*k}, v{73+2*k}')
        self.st_fin(F)
        extra = list(extra)
        for k in range(20):
            a(self.nrm(self.XP(k), k))
            if k < 5: vm.op(f'buffer_store_dwordx4 v[{16+4*k}:{19+4*k}], v8, {WS_}, {sO1} offen offset:{256*k} sc1', 'XS')
            if k: a(f'v_cvt_pk_bf16_f32 v{36+k-1}, v{72+2*k-2}, v{73+2*k-2}')
            if k % 4 == 1 and k > 4:
                u = k // 4 - 1
                vm.op(f'buffer_store_dwordx4 v[{36+4*u}:{39+4*u}], v8, {WS_}, {sO2} offen offset:{256*u} sc1', 'AS')
        a('v_cvt_pk_bf16_f32 v55, v110, v111')
        vm.op(f'buffer_store_dwordx4 v[52:55], v8, {WS_}, {sO2} offen offset:1024 sc1', 'AS')
    def y_read(self, ds, dst):
        for u in range(5): ds.op(f'ds_read2st64_b64 v[{dst+4*u}:{dst+4*u+3}], v10 offset0:{8*u} offset1:{8*u+1}', ('Y', u))
    def ln_subs(self):
        a = self.a
        a('LN_PRE:')
        for k in range(20):
            for o in self.st_acc(k): a(o)
        self.st_fin()
        for k in range(20): a(self.nrm(self.NP(k), k))
        a(f's_setpc_b64 {RET2}')
        a('LN1:')
        self.ln_offs(0)
        a(f'''
        s_lshl_b32 {t3}, {N}, 2
        s_lshr_b32 {t4}, {G}, 3
        s_add_u32 {t3}, {t3}, {t4}
        s_mul_i32 {t3}, {t3}, {160*128}
        s_add_u32 {t3}, {t3}, {FY}
        s_mul_i32 {t4}, {W}, 5120
        s_add_u32 {t2}, {t2}, {t4}
        s_mul_i32 {t5}, {N}, 20480
        s_add_u32 m0, {t5}, {t4}
        ''')
        self.poll('v69', t3)
        self.stampn(10)
        for y in range(4): a(f'buffer_load_dwordx4 v68, {WS_}, {t2} offen offset:{1024*y} sc1 lds')
        a(f'''
        s_add_u32 m0, m0, 4096
        s_add_u32 {t2}, {t2}, 4096
        buffer_load_dwordx4 v68, {WS_}, {t2} offen sc1 lds
        s_waitcnt vmcnt(0)
        s_barrier
        ''')
        self.stampn(38)
        ds = DS(a); vm = VM(a)
        self.y_read(ds, 16)
        a('v_add_u32 v10, 20480, v10')
        for k in range(21):
            if k < 20:
                ds.need(('Y', k // 4))
                r = 64 + 2 * (k & 1)
                for o in self.unp(r, 16 + k): a(o)
            if k:
                for o in self.st_acc(k - 2) if k >= 2 else []: a(o)
            if k < 20: a(f'v_pk_fma_f32 {self.XP(k)}, v[{r}:{r+1}], {self.NP(k)}, {self.XP(k)}')
        for o in self.st_acc(19): a(o)
        self.ln_tail(vm)
        self.stampn(42)
        a(f's_setpc_b64 {RET}')
    def ln_unpack(self, src):
        for k in range(20):
            for o in self.unp(72 + 2*k, src + k): self.a(o)
    def ln_offs(self, layer):
        self.a(f'''
        s_lshl_b32 {t1}, {N}, 5
        s_add_u32 {t1}, {t1}, {G}
        s_mul_i32 {t0}, {t1}, 20480
        s_add_u32 {sO1}, {t0}, {XB + layer*SZ}
        s_add_u32 {sO2}, {t0}, {AB + layer*SZ}
        s_add_u32 {t2}, {t0}, {YB}
        s_lshl_b32 {t3}, {t1}, 2
        s_add_u32 {t3}, {t3}, {W}
        s_lshl_b32 {t3}, {t3}, 7
        s_add_u32 {sFH}, {t3}, {FA + layer*4*128*128}
        ''')
    def ln2_pre(self):
        a = self.a; ds = DS(a)
        self.y_read(ds, 16)
        a(f'''
        v_add_u32 v10, 20480, v10
        s_lshl_b32 {t1}, {N}, 5
        s_add_u32 {t1}, {t1}, {G}
        s_lshl_b32 {t1}, {t1}, 12
        s_add_u32 {sPFL}, {t1}, {FF}
        ''')
        for k in range(20):
            ds.need(('Y', k // 4))
            for o in self.unp(112 + 2*k, 16 + k): a(o)
    def ln2(self):
        a = self.a
        self.ln_offs(1)
        a(f's_add_u32 {t4}, {t0}, {FB}\ns_waitcnt vmcnt(1)')
        self.check(self.spin('v176', sPFL))
        self.stampn(18)
        vm = VM(a, ['FS'])
        for u in range(5): vm.op(f'buffer_load_dwordx4 v[{152+4*u}:{155+4*u}], v{2+u}, {WS_}, {t4} offen sc1', ('X', u))
        vm.need('FS'); vm.op(self.flag_s(sPF))
        for k in range(20):
            vm.need(('X', k // 4))
            for o in self.unp(72 + 2*k, 152 + k): a(o)
            if k:
                for o in self.st_acc(k - 1): a(o)
        for o in self.st_acc(19): a(o)
        self.st_fin((), 172, 174)
        for k in range(22):
            r = 64 + 2 * (k & 1)
            if k < 20: a(self.nrm(f'v[{r}:{r+1}]', k, 172, 174))
            if k >= 2:
                for o in self.st_acc(k - 2): a(o)
            if k < 20: a(f'v_pk_fma_f32 {self.XP(k)}, {self.NP(k)}, v[{r}:{r+1}], {self.XP(k)}')
        self.ln_tail(vm)
        self.stampn(46)
        a('s_waitcnt vmcnt(0)')
        self.flag(sFH)
        self.stampn(22)

    def gelu_ops(self, acc):
        O = []
        for p in range(0, 4, 2):
            S_ = []
            for q in (p, p + 1):
                g = acc + 2 * q; u = g + 8; t = 68 + 2 * (q & 1); G2 = f'v[{g}:{g+1}]'; U2 = f'v[{u}:{u+1}]'
                S_.append([f'v_pk_fma_f32 v[{t}:{t+1}], {G2}, {G2}, s[100:101] op_sel_hi:[1,1,0]',
                  f'v_pk_mul_f32 {U2}, {G2}, {U2}',
                  f'v_pk_mul_f32 {G2}, {G2}, s[100:101] op_sel:[0,1] op_sel_hi:[1,1]',
                  f'v_pk_mul_f32 {G2}, {G2}, v[{t}:{t+1}]',
                  f'v_exp_f32 v{g}, v{g}', f'v_exp_f32 v{g+1}, v{g+1}',
                  f'v_pk_add_f32 {G2}, {G2}, 1.0 op_sel_hi:[1,0]',
                  f'v_rcp_f32 v{g}, v{g}', f'v_rcp_f32 v{g+1}, v{g+1}',
                  f'v_pk_mul_f32 {U2}, {U2}, {G2}',
                  f'v_cvt_pk_bf16_f32 v{64+q}, v{u}, v{u+1}'])
            for x_, y_ in zip(*S_): O += [x_, y_]
        return O
    def a_init(self):
        self.a(f'''
        s_mov_b32 {sPA}, {FA}
        s_mul_i32 {sAD}, {G}, {64*1280}
        s_add_u32 {sAD}, {sAD}, {AB}
        s_add_u32 {sQB}, {sAD}, {32*1280}
        ''')
    def a_dma(self, slot, soff, srd=WS_):
        O = []
        for cb in range(10):
            O.append((f's_add_u32 m0, {sMA}, {slot}\n' if cb == 0 else '') +
                     f'buffer_load_dwordx4 v6, {srd}, {soff} offen offset:{128*cb} sc1 lds' + ('\ns_add_u32 m0, m0, 896' if cb < 9 else ''))
        return O
    def h_dma(self, soff):
        O = []
        for k in range(14):
            s_ = f's_mov_b32 m0, {sMH}\n' if k == 0 else ''
            if k and k & 3 == 0: s_ = f's_add_u32 m0, m0, 4096\ns_add_u32 {soff}, {soff}, {sDUP if k == 12 else 4096}\n'
            O.append(s_ + f'buffer_load_dwordx4 v1, {WS_}, {soff} offen offset:{1024*(k&3)} sc1 lds')
        return O
    def x_dma(self):
        return f's_add_u32 m0, {sMH}, 14336\ns_mov_b32 exec_hi, 0xff\nbuffer_load_dwordx4 v13, {WS_}, {sXA} offen sc1 lds\ns_mov_b32 exec_hi, -1'
    def red_ops(self, ds, srd, voff, soff, vm):
        a = self.a
        rd = lambda r, off, tag: (lambda: ds.op(f'ds_read_b128 v[{r}:{r+3}], v12 offset:{off}', tag))
        add = lambda d, s_, tag=None: (lambda: (ds.need(tag) if tag else None, a(f'v_pk_add_f32 v[{d}:{d+1}], v[{d}:{d+1}], v[{s_}:{s_+1}]')))
        R1 = [rd(32, 0, None), rd(40, 5376, 'p1a'), rd(36, 16, None), rd(44, 5392, 'p1b'), rd(64, 10752, 'p2a'), rd(68, 10768, 'p2b')]
        A1 = [add(32, 40, 'p1a'), add(34, 42), add(36, 44, 'p1b'), add(38, 46)]
        R2 = [rd(40, 16128, 'p3a'), rd(44, 16144, 'p3b')]
        A2 = [add(32, 64, 'p2a'), add(34, 66), add(36, 68, 'p2b'), add(38, 70)]
        R3 = [lambda: (vm.need('x'), ds.op('ds_read_b128 v[64:67], v7 offset:14336', 'x'))]
        A3 = [add(32, 40, 'p3a'), add(34, 42), add(36, 44, 'p3b'), add(38, 46)]
        A4 = []
        for k in range(4):
            t = 68 + 2 * (k & 1)
            A4 += [lambda k=k, t=t: (ds.need('x'), a(f'v_lshlrev_b32 v{t}, 16, v{64+k}')), lambda k=k, t=t: a(f'v_and_b32 v{t+1}, 0xffff0000, v{64+k}'),
                   add(32 + 2*k, t), lambda k=k: a(f'v_cvt_pk_bf16_f32 v{64+k}, v{32+2*k}, v{33+2*k}')]
        A4 = A4[0:2] + A4[4:6] + [A4[2], A4[6], A4[3], A4[7]] + A4[8:10] + A4[12:14] + [A4[10], A4[14], A4[11], A4[15]]
        ST = [lambda: vm.op(f's_mov_b32 exec_hi, 0xff\nbuffer_store_dwordx4 v[64:67], {voff}, {srd}, {soff} offen sc1\ns_mov_b32 exec_hi, -1', 'FS')]
        return R1, A1, R2, A2, R3, A3, A4, ST
    def g1_init(self):
        c2 = -2.0*0.7978845608028654*1.4426950408889634*0.044715
        self.a(f'''
        s_mov_b32 s100, {hex(f2u(1/0.044715))}
        s_mov_b32 s101, {hex(f2u(c2))}
        s_mov_b32 {N}, 0
        s_lshl_b32 {t2}, {FS}, 2
        s_add_u32 {t2}, {t2}, {W}
        s_mul_i32 {t1}, {G}, {4*HST}
        s_lshl_b32 {t3}, {t2}, 9
        s_add_u32 {t1}, {t1}, {t3}
        s_add_u32 {sQH}, {t1}, {HB}
        s_mul_i32 {t0}, {G}, 112
        s_add_u32 {t0}, {t0}, {t2}
        s_lshl_b32 {t0}, {t0}, 7
        s_add_u32 {sFH}, {t0}, {FH}
        s_mov_b32 {sXH}, 0
        ''')
        self.g_offs()
        self.a(f'''
        s_sub_u32 {sO1}, {sO1}, {32*20480}
        s_sub_u32 {sPF}, {sPF}, 0x20000
        s_mov_b64 {sSEL}, 0
        ''')
    def g_offs(self):
        self.a(f'''
        s_lshl_b32 {t0}, {sXH}, 3
        s_add_u32 {t0}, {t0}, {X}
        s_mul_i32 {t0}, {t0}, 112
        s_mul_i32 {t1}, {W}, 28
        s_add_u32 {t0}, {t0}, {t1}
        s_lshl_b32 {t0}, {t0}, 7
        s_and_b32 {t1}, {T}, 2
        s_lshl_b32 {t1}, {t1}, 5
        s_add_u32 {t0}, {t0}, {t1}
        s_add_u32 {sPH}, {t0}, {FH}
        s_lshl_b32 {t0}, {sXH}, 5
        s_add_u32 {t0}, {t0}, {T}          ; m*32+T
        s_mul_i32 {t1}, {t0}, {HST}
        s_mul_i32 {t2}, {W}, 14336
        s_add_u32 {t1}, {t1}, {t2}
        s_add_u32 {sHD}, {t1}, {HB}
        s_mul_i32 {t1}, {t0}, 20480
        s_mul_i32 {t2}, {S}, 160
        s_add_u32 {t1}, {t1}, {t2}
        s_add_u32 {sXA}, {t1}, {XB}
        s_lshl_b32 {t1}, {t0}, 2
        s_add_u32 {t1}, {t1}, {W}
        s_lshl_b32 {t1}, {t1}, 3
        s_add_u32 {t1}, {t1}, {S}
        s_lshl_b32 {t1}, {t1}, 7
        s_add_u32 {sPF}, {t1}, {FF}
        s_and_b32 {t0}, {t0}, 127          ; c*32+T
        s_mul_i32 {t1}, {t0}, 20480
        s_add_u32 {sOUT}, {t1}, {t2}
        s_mul_i32 {t2}, {S}, 2560
        s_add_u32 {t1}, {t1}, {t2}
        s_mul_i32 {t2}, {W}, 640
        s_add_u32 {t1}, {t1}, {t2}
        s_add_u32 {sO1}, {t1}, {FB}
        ''')
    def g1_iter(self, first, vq, dq):
        a = self.a; P = self.P
        ds = DS(a); ds.q = list(dq); vm = VM(a, vq)
        ds.done |= {t for t in (('Q', 0), ('Q', 1)) if t not in dq}
        QS = [2, 0, 1, 3]
        qr = lambda ks: 48 + 4 * QS[ks & 3]
        def rdQ(ks, tag=None):
            kk = ks % 40
            ds.op(f'ds_read_b128 v[{qr(ks)}:{qr(ks)+3}], v{2+(kk&3)} offset:{(L_B if ks >= 40 else L_A) + 1024*(kk>>2)}', tag or ('Q', ks))
        hr = lambda k: 48 + 4 * (k % 3)
        def rdH(k):
            vm.need(('H', k)); ds.op(f'ds_read_b128 v[{hr(k)}:{hr(k)+3}], v7 offset:{1024*k}', ('H', k))
        ev = {}
        def at(pos, *fs): ev.setdefault(pos, []).extend(fs)
        def spread(p0, p1, fs):
            n = len(fs)
            for i, f in enumerate(fs): at(p0 + (i * (p1 - p0 + 1)) // n, f)
        A_ = lambda t: (lambda: a(t))
        V_ = lambda t, tag=None: (lambda: vm.op(t, tag))
        wj = lambda j: (lambda: ds.op(f'ds_write_b128 v11, v[{(16+4*j) if j < 4 else 60}:{(19+4*j) if j < 4 else 63}] offset:{64*j}', ('W', j)))
        G0 = 80
        at(0, lambda: rdQ(2))
        if not first: at(0, wj(4))
        at(0, lambda: rdQ(3))
        for ks in range(1, 77):
            if ks == 37:
                def b2():
                    vm.need('PRE' if first else ('B', 9)); a('s_barrier')
                at(36, b2)
            at(ks, lambda ks=ks: rdQ(ks + 3))
        if first:
            at(36, V_(self.flag_s(sO2) + f'\ns_add_u32 {sO2}, {sO2}, {640*128}'), V_(self.flag_s(sO2)))
            for i, f in enumerate(range(NWC, 70)): at(1 + 2 * i, V_(self.wd_ld(f)))
        else:
            R1, A1, R2, A2, R3, A3, A4, ST = self.red_ops(ds, WSB, 'v14', sO1, vm)
            at(2, lambda: (ds.need(('W', 4)), a('s_barrier')))
            spread(2, 4, R1); spread(6, 7, A1[:2] + A1[2:]); at(7, *R2); spread(8, 9, A2); at(9, *R3)
            spread(10, 11, A3); spread(12, 15, A4)
            at(16, A_(f'v_cndmask_b32 v14, v1, v13, {sSEL}')); at(16, *ST)
            at(17, A_(f's_add_u32 {sO1}, {sO1}, {32*20480}'))
            at(P.get('hbf', 12), lambda: vm.need('HB'), V_(self.flag_s(sFH, 64)), A_(f's_add_u32 {sFH}, {sFH}, {8*112*128}'))
            at(P.get('hp', 28), V_(f'buffer_load_dword v14, v9, {WS_}, {sPH} offen sc1', 'PH'))
            hc = P.get('hc', 42)
            at(hc, lambda: vm.need('PH'), lambda: self.check(self.spin('v9', sPH)), V_(self.flag_s(sPF)),
               A_(f's_add_u32 {sPF}, {sPF}, 0x20000\ns_add_u32 {sPH}, {sPH}, {8*112*128}'))
            for k, o in enumerate(self.h_dma(sHD)): at(hc + 1 + 2 * k, V_(o, ('H', k)))
            at(hc + 28, A_(f's_add_u32 {sHD}, {sHD}, {sHinc}'))
        ap, ac = P.get('ap', 52), P.get('ac', 70)
        at(20, A_(f's_add_u32 {sPA}, {sPA}, 16384\ns_min_u32 {sPA}, {sPA}, {FA + 7*16384}'))
        at(21, A_(f's_add_u32 {sAD}, {sAD}, {8*64*1280}\ns_add_u32 {sQB}, {sQB}, {8*64*1280}'))
        at(ap, V_(f'buffer_load_dword v14, v10, {WS_}, {sPA} offen sc1', 'PA'))
        ga = P.get('ga', 64)
        spread(41, ga, [A_(o) for o in self.gelu_ops(16)])
        at(ga + 2, V_(f'buffer_store_dwordx4 v[64:67], v8, {WS_}, {sQH} offen sc1\ns_add_u32 {sQH}, {sQH}, {2*HST}', 'HA'))
        at(ac, lambda: vm.need('PA'), A_(self.acheck() + f'\ns_cmp_eq_u32 {N}, 7\ns_cselect_b32 s62, 0, s62'))
        AD = [V_(o, ('A', k)) for k, o in enumerate(self.a_dma(L_A, sAD, WSD))]
        BD = [V_(o, ('B', k)) for k, o in enumerate(self.a_dma(L_B, sQB, WSD))]
        for k in range(4): at(72 + 2 * k, AD[k])
        GB = [A_(o) for o in self.gelu_ops(32)]
        HBs = V_(f'buffer_store_dwordx4 v[64:67], v8, {WS_}, {sQH} offen sc1\ns_add_u32 {sQH}, {sQH}, {30*HST}', 'HB')
        HAf = [lambda: vm.need('HA'), V_(self.flag_s(sFH))]
        def b1():
            L = a.label('ONTIME')
            a(f's_cmp_lg_u32 s62, 0\ns_cbranch_scc1 {L}\ns_cmp_eq_u32 {N}, 7\ns_cbranch_scc1 {L}\ns_call_b64 {RET}, A_LATE\n{L}:')
            vm.need(('A', 9) if first else 'x'); a('s_barrier')
        if not first:
            at(78, lambda: rdH(0)); at(79, lambda: rdH(1))
            for k in range(2, 14): at(G0 + 5 * (k - 2), lambda k=k: rdH(k))
            for k in range(4, 10): at(G0 + 4 * (k - 4) + 1, AD[k])
            spread(G0 + 3, G0 + 30, GB)
            at(G0 + 22, V_(self.x_dma(), 'x'), A_(f's_add_u32 {sXA}, {sXA}, {32*20480}'))
            at(G0 + 23, A_('s_barrier'))
            for k in range(10): at(G0 + 24 + 4 * k, BD[k])
            at(G0 + 32, HBs)
            at(G0 + P.get('haf', 46), *HAf)
            at(G0 + 60, b1, lambda: rdQ(0, ('Q', 0)))
            at(G0 + 65, lambda: rdQ(1, ('Q', 1)))
            at(G0 + 61, A_(f's_add_u32 {N}, {N}, 1'))
            at(G0 + 62, A_(f's_cmp_eq_u32 {N}, 6\ns_cselect_b32 {sO1}, {sOUT}, {sO1}\ns_cselect_b32 s56, s40, s56\ns_cselect_b32 s57, s41, s57'))
            at(G0 + 63, A_(f's_cselect_b32 s58, {SZ}, s58\ns_cselect_b64 {sSEL}, -1, {sSEL}'))
            at(G0 + 67, wj(0)); at(G0 + 68, wj(1)); at(G0 + 69, wj(2), wj(3))
        for ks in range(80):
            ds.need(('Q', ks))
            c = 'v[16:31]' if ks < 40 else 'v[32:47]'; kk = ks % 40
            a(f'v_mfma_f32_32x32x16_bf16 {c}, v[{72+4*kk}:{75+4*kk}], v[{qr(ks)}:{qr(ks)+3}], {c if kk else 0}')
            for f in ev.get(ks, []): f()
            if ks == 39: self.stampn(18)
        self.stampn(26)
        if first:
            rest = AD[4:]
            for i, g in enumerate(GB):
                if i % 6 == 0 and rest: rest.pop(0)()
                g()
            HBs(); a('s_barrier')
            for f in BD + HAf: f()
            b1(); rdQ(0, ('Q', 0)); rdQ(1, ('Q', 1))
            ds.q = [('Q', 0), ('Q', 1)]
            a(f's_add_u32 {N}, {N}, 1\ns_waitcnt lgkmcnt(0)')
        else:
            for i in range(70):
                k, j = divmod(i, 5)
                ds.need(('H', k))
                c = f'v[{16+4*j}:{19+4*j}]' if j < 4 else 'v[60:63]'
                a(f'v_mfma_f32_16x16x32_bf16 {c}, {self.wd_reg(k, j)}, v[{hr(k)}:{hr(k)+3}], {c if k else 0}')
                for f in ev.get(G0 + i, []): f()
        return vm, ds
    def g1_loop(self):
        a = self.a
        self.stampn(10)
        a(f'ds_read_b128 v[56:59], v2 offset:{L_A}\nds_read_b128 v[48:51], v3 offset:{L_A}')
        vf, df = self.g1_iter(True, ['PRE'], [('Q', 0), ('Q', 1)])
        keep = (self.a, list(self.ool)); self.a = Asm()
        v1_, d1 = self.g1_iter(False, vf.q, df.q)
        self.a = Asm(); v2_, d2 = self.g1_iter(False, v1_.q, d1.q)
        assert v2_.q == v1_.q and d2.q == d1.q, (v1_.q, v2_.q, d1.q, d2.q)
        for tag in ('HB', 'x', ('B', 9)):
            x_, y_ = vf.after(tag), v1_.after(tag)
            assert x_ is None and tag == 'x' or y_ is None or x_ >= y_, (tag, x_, y_)
        self.a, self.ool = keep
        a('G1_LOOP:')
        i0 = len(a.l)
        self.stampn(10)
        vm, ds = self.g1_iter(False, v1_.q, d1.q)
        a(f's_cmp_lt_u32 {N}, 8\ns_cbranch_scc1 G1_LOOP')
        body = [l for l in a.l[i0:] if not l.endswith(':')]
        b1_ = Asm(); b1_.l = body; b1_.text(); b2_ = Asm(); b2_.l = body + body; b2_.text()
        assert b2_.nops == 2 * b1_.nops, (b1_.nops, b2_.nops)
        print('loop nops', b1_.nops, 'lines', len(body), 'vm', vm.log)
        self.stampn(10)
        ds.done = set()
        ds.op('ds_write_b128 v11, v[60:63] offset:256', ('W', 4))
        ds.need(('W', 4)); a('s_barrier')
        R = self.red_ops(ds, WSB, 'v13', sO1, vm)
        for f in R[0]: f()
        vm.need('HB'); vm.op(self.flag_s(sFH, 64))
        for grp in R[1:]:
            for f in grp: f()
    def a_late(self):
        a = self.a
        a('A_LATE:')
        self.poll('v10', sPA)
        for o in self.a_dma(L_A, sAD) + self.a_dma(L_B, sQB): a(o)
        a(f's_waitcnt vmcnt(10)\ns_setpc_b64 {RET}')
    def g_sub(self):
        a = self.a
        a('G_SUB:')
        self.g_offs()
        a(f'''
        s_cmp_ge_u32 {sXH}, 4
        s_cselect_b32 {sO1}, {sOUT}, {sO1}
        s_cselect_b32 s56, s40, s44
        s_cselect_b32 s57, s41, s45
        s_cselect_b32 s58, s42, s46
        s_cselect_b64 {sSEL}, -1, 0
        ''')
        self.stamp(50)
        self.poll('v9', sPH)
        self.stamp(51)
        ds = DS(a); vm = VM(a)
        for k, o in enumerate(self.h_dma(sHD)): vm.op(o, ('H', k))
        vm.op(self.x_dma(), 'x')
        def rd(k):
            vm.need(('H', k)); ds.op(f'ds_read_b128 v[{48+4*(k%3)}:{51+4*(k%3)}], v7 offset:{1024*k}', k)
        rd(0)
        self.stamp(52)
        rd(1)
        for ks in range(14):
            ds.need(ks)
            for j in range(5):
                c = f'v[{16+4*j}:{19+4*j}]' if j < 4 else 'v[60:63]'
                a(f'v_mfma_f32_16x16x32_bf16 {c}, {self.wd_reg(ks, j)}, v[{48+4*(ks%3)}:{51+4*(ks%3)}], {c if ks else 0}')
                if j == 0 and ks + 2 < 14: rd(ks + 2)
                if ks == 12 and j == 1:
                    vm.need('x')
                    a(f's_barrier\ns_bitcmp1_b32 {ROLE}, 2\ns_cbranch_scc0 G_NOP\nbuffer_load_dword v14, v176, {WS_}, {sPFL} offen sc1\nG_NOP:')
                if ks == 13 and j >= 2: ds.op(f'ds_write_b128 v11, v[{16+4*(j-2)}:{19+4*(j-2)}] offset:{64*(j-2)}')
        self.stamp(53)
        ds.op('ds_write_b128 v11, v[28:31] offset:192'); ds.op('ds_write_b128 v11, v[60:63] offset:256', 'W')
        a(f'v_cndmask_b32 v16, v1, v13, {sSEL}')
        ds.need('W'); a('s_barrier')
        for grp in self.red_ops(ds, WSB, 'v16', sO1, vm):
            for f in grp: f()
        self.stamp(54)
        a(f's_setpc_b64 {RET}')

    def tsw(self):
        if self.timers: self.a('v_mov_b32 v0, v71')
        self.tv = 'v0'
    def prep(self, lab):
        a = self.a
        a(f's_bitcmp1_b32 {ROLE}, 3\ns_cbranch_scc0 {lab}')
        self.wd_prep()
        a('s_waitcnt vmcnt(0)')
        self.flag(t5)
        self.stamp(58)
        a(f'{lab}:')
    def main(self):
        a = self.a
        self.prologue()
        self.p0()
        self.stamp(56)
        a(f'''
        s_bitcmp1_b32 {ROLE}, 0
        s_cbranch_scc1 R_G1
        s_bitcmp1_b32 {ROLE}, 2
        s_cbranch_scc1 R_LN
        s_waitcnt vmcnt(0)
        ''')
        self.flag(t4)
        self.stamp(2)
        self.prep('G2_NP')
        a(f's_call_b64 {RET2}, WD_ALL')
        self.tsw()
        a(f'''
        s_mov_b32 {sXH}, 0
        G2_LOOP:
        s_call_b64 {RET}, G_SUB
        s_waitcnt vmcnt(0)
        ''')
        self.flag(sPF)
        a(f'''
        s_add_u32 {sXH}, {sXH}, 1
        s_cmp_lt_u32 {sXH}, 8
        s_cbranch_scc1 G2_LOOP
        s_branch DONE
        ''')
        self.tv = 'v71'
        a('R_LN:')
        self.ln_setup()
        a(f's_mov_b32 {sC1}, {hex(f2u(1/640))}\ns_waitcnt vmcnt(20)')
        self.flag(t4)
        self.stamp(2)
        a(f's_call_b64 {RET2}, WD_ALL')
        self.tsw()
        self.stamp(3)
        for c in range(4):
            self.ln_unpack(152 + 20 * c)
            a(f's_call_b64 {RET2}, LN_PRE')
            if c:
                a('s_waitcnt vmcnt(0)'); self.flag(sFH); self.stampn(14)
            a(f's_mov_b32 {N}, {c}\ns_call_b64 {RET}, LN1')
        self.ln_setup2()
        a('s_waitcnt vmcnt(0)'); self.flag(sFH); self.stampn(14)
        a(f'''
        s_mov_b32 {sXH}, 0
        LN2_LOOP:
        s_sub_u32 {N}, {sXH}, 1
        s_cmp_ge_u32 {N}, 4
        s_cbranch_scc1 LN2_G
        ''')
        self.ln2_pre()
        a(f's_call_b64 {RET}, G_SUB')
        self.ln2()
        a(f'''
        s_branch LN2_NEXT
        LN2_G:
        s_call_b64 {RET}, G_SUB
        s_waitcnt vmcnt(0)
        ''')
        self.flag(sPF)
        a(f'''
        LN2_NEXT:
        s_add_u32 {sXH}, {sXH}, 1
        s_cmp_lt_u32 {sXH}, 8
        s_cbranch_scc1 LN2_LOOP
        s_branch DONE
        ''')
        self.tv = 'v71'
        a('R_G1:')
        self.w1_setup()
        self.w1_issue(16)
        a(f'''
        s_bitcmp1_b32 {ROLE}, 1
        s_cbranch_scc1 R_CONV
        s_waitcnt vmcnt(16)
        ''')
        self.flag(t4)
        self.stamp(2)
        self.prep('G1_NP')
        self.w1_consume(0, 16); self.w1_issue(16); self.w1_consume(16, 16); self.w1_issue(8); self.w1_consume(32, 8)
        a(f's_call_b64 {RET2}, WD_ALL')
        self.a_init()
        a(f's_mov_b32 {sO2}, {FF - 0x20000}\ns_branch G1_LATE\nR_CONV:\ns_waitcnt vmcnt(16)')
        self.flag(t4)
        self.stamp(2)
        self.hbuild()
        self.stamp(57)
        self.w1_consume(0, 16)
        self.w1_issue(16)
        self.stamp(3)
        self.conv()
        assert self.conv_q[-12:] == ['B'] * 10 + [('Y', 2), ('Y', 3)], self.conv_q
        a(f'''
        s_cmp_lg_u32 s62, 0
        s_cbranch_scc1 G1_MAIN
        G1_LATE:
        s_call_b64 {RET}, A_LATE
        G1_MAIN:
        ''')
        self.g1_init()
        self.tsw()
        a('s_waitcnt vmcnt(12)\ns_barrier')
        self.g1_loop()
        a(f'''
        s_mov_b32 {sXH}, 7
        s_call_b64 {RET}, G_SUB
        DONE:
        ''')
        self.stamp(62)
        if self.timers:
            a(f'''
            s_memrealtime {TM}
            s_waitcnt lgkmcnt(0)
            v_writelane_b32 v0, s96, 61
            s_lshl_b32 {t0}, s2, 2
            s_add_u32 {t0}, {t0}, {W}
            s_lshl_b32 {t0}, {t0}, 8
            s_add_u32 {t0}, {t0}, {TIM}
            v_lshrrev_b32 v16, 2, v1
            buffer_store_dword v0, v16, {WS_}, {t0} offen
            ''')
        a(f'''
        s_or_b32 {t0}, s2, {W}
        s_cbranch_scc1 FIN
        ''')
        self.flag('0')
        a('''
        FIN:
        s_waitcnt vmcnt(0)
        EXIT:
        s_endpgm
        ''')
        self.g_sub(); self.ln_subs(); self.wd_subs(); self.a_late(); self.emit_ool()

def build(path, **kw):
    g = Gen(**kw); g.main()
    ref = open('interleave_layers__ssm_conv_h3__geglu_ffn__prompt.s.ref').read().split('\n')
    hdr = [l for l in ref if l.startswith(';') and '@launch' not in l]
    hdr = hdr[:14] + ['; @launch grid=(256,1,1) block=(256,1,1) lds=163840']
    txt = '\n'.join(hdr) + f'\n.amdgcn_target "amdgcn-amd-amdhsa--gfx950"\n.text\n.globl {KN}\n.p2align 8\n.type {KN},@function\n{KN}:\n'
    txt += g.a.text() + kern_desc(KN)
    open(path, 'w').write(txt)
    print(path, 'lines', txt.count('\n'), 'nops', g.a.nops)

if __name__ == '__main__':
    build('k_t.s', timers=True)
    build('k.s')
```

```python
import sys, struct, re
from asm2 import *

def f2u(f): return struct.unpack('<I', struct.pack('<f', f))[0]

FP0 = 0x1000; FY = FP0 + 0x20000; FA = FY + 0x50000; FW = FA + 0x20000; FH = FW + 0x8000
FF = FH + 0xE0000 + 0x20000; TIM = FF + 0x100000
UT = 0x300000; YB = 0x600000; AB = 0x900000; XB = 0xE00000; FB = 0x13A0000; HB = 0x1700000; WF = 0x2500000
WS_SIZE = 0x2800000
assert TIM + 0x40000 <= UT
SZ = 0x280000
HST = 57344
L_A = 0; L_B = 40960; L_H = 81920; LHS = 15104; L_R = L_H + 4 * LHS
L_CW = 21248; L_U = 16640; L_W1 = 84992; L_X = 153600
assert L_R + 4 * 5376 <= 163840
K_, V_, SK_, H_, D_, Q_, WG_, WU_, WD_, OUT_, WS_ = [f's[{4*i+4}:{4*i+7}]' for i in range(11)]
TAG, W, X, II, T, S, G, FS = [f's{i}' for i in range(48, 56)]
WSB = 's[56:59]'; WSD = 's[60:63]'; W1_ = 's[64:67]'
N = 's68'; CNT = 's69'
sQB, sQH, sPF, sPH, sXH, sHD, sFH, sPA, sXA, sAD, sO1, sO2 = [f's{i}' for i in range(70, 82)]
sMA = 's82'
sMH = 's83'
sWDo = 's84'
sW1o = 's85'
t0, t1, t2, t3, t4, t5 = [f's{i}' for i in range(86, 92)]
RET = 's[92:93]'; RET2 = 's[94:95]'
TM = 's[96:97]'
ROLE = 's98'
WS3 = 's[28:31]'
sKSG = 's32'; sDUP = 's33'; sHinc = 's34'; sPFL = 's35'
sSEL = 's[4:5]'
sC1 = 's7'
sOUT = 's6'
XS_ = 's[8:11]'
sLO = 's12'; sHI = 's13'; sPY = 's14'; sMSK = 's15'
LIMIT = 0x10000
AL = (2.0*0.7978845608028654*1.4426950408889634*0.044715) ** (1/3)
NWC = 38

class DS:
    def __init__(self, a): self.a = a; self.q = []; self.done = set()
    def op(self, txt, tag=None):
        self.a(txt); self.q.append(tag)
    def need(self, tag):
        if tag in self.done: return
        i = self.q.index(tag)
        n = len(self.q) - 1 - i
        k = min(n, 15)
        self.a(f's_waitcnt lgkmcnt({k})')
        cut = len(self.q) - k
        for t_ in self.q[:cut]: self.done.add(t_)
        self.q = self.q[cut:]

class VM:
    def __init__(self, a, q=None): self.a = a; self.q = list(q or []); self.log = {}
    def op(self, txt, tag=None):
        self.a(txt); self.q.append(tag)
    def need(self, tag):
        if tag not in self.q: return
        i = len(self.q) - 1 - self.q[::-1].index(tag)
        n = len(self.q) - 1 - i
        self.log[tag] = n
        k = min(n, 63)
        self.a(f's_waitcnt vmcnt({k})')
        self.q = self.q[len(self.q) - k:] if k else []
    def after(self, tag):
        return None if tag not in self.q else self.q[::-1].index(tag)

class Gen:
    def __init__(self, timers=False, stop_after=None, dbg=False, **P):
        self.a = Asm(); self.timers = timers; self.stop = stop_after; self.dbg = dbg
        self.nst = 0; self.tv = 'v71'; self.P = P; self.ool = []
    def stamp(self, k):
        if not self.timers: return
        self.a(f'''
        s_memtime {TM}
        s_waitcnt lgkmcnt(0)
        v_writelane_b32 {self.tv}, s96, {k}
        ''')
    def stampn(self, base, mul=1):
        if not self.timers: return
        self.a(f'''
        s_memtime {TM}
        s_mov_b32 s3, m0
        s_mul_i32 s99, {N}, {mul}
        s_add_u32 m0, s99, {base}
        s_waitcnt lgkmcnt(0)
        v_writelane_b32 {self.tv}, s96, m0
        s_mov_b32 m0, s3
        ''')
    def poll(self, vaddr, soff, srd=WS_, exp=TAG):
        a = self.a; L = a.label('POLL'); D = a.label('PDONE')
        a(f'''
        s_mov_b32 {CNT}, {LIMIT}
        {L}:
        buffer_load_dword v14, {vaddr}, {srd}, {soff} offen sc1
        s_waitcnt vmcnt(0)
        v_cmp_ne_u32 vcc, {exp}, v14
        s_cbranch_vccz {D}
        s_sub_u32 {CNT}, {CNT}, 1
        s_cbranch_scc0 {L}
        {D}:
        ''')
    def spin(self, vaddr, soff):
        L = self.a.label('SPIN'); R = self.a.label('SRET')
        self.ool.append((L, R, vaddr, soff)); return L, R
    def check(self, lr, r='v14'):
        self.a(f'v_cmp_ne_u32 vcc, {TAG}, {r}\ns_cbranch_vccnz {lr[0]}\n{lr[1]}:')
    def emit_ool(self):
        for L, R, va, so in self.ool:
            self.a(f'{L}:'); self.poll(va, so); self.a(f's_branch {R}')
    @staticmethod
    def acheck():
        return f'v_cmp_ne_u32 vcc, {TAG}, v14\ns_cmp_eq_u64 vcc, 0\ns_cselect_b32 s62, {WS_SIZE}, 0'
    @staticmethod
    def flag_s(soff, off=0):
        return f's_mov_b64 exec, 1\nbuffer_store_dword v15, off, {WS_}, {soff} {"offset:%d " % off if off else ""}sc1\ns_mov_b64 exec, -1'
    def flag(self, soff, off=0): self.a(self.flag_s(soff, off))

    def prologue(self):
        a = self.a
        a(f'''
        s_cmp_ge_u32 s2, 256
        s_cbranch_scc1 EXIT
        s_load_dwordx2 s[4:5], s[0:1], 8
        s_load_dwordx2 s[8:9], s[0:1], 16
        s_load_dwordx2 s[12:13], s[0:1], 24
        s_load_dwordx2 s[44:45], s[0:1], 96
        s_load_dwordx2 s[16:17], s[0:1], 32
        s_load_dwordx2 s[20:21], s[0:1], 40
        s_load_dwordx2 s[24:25], s[0:1], 0
        s_load_dwordx2 s[28:29], s[0:1], 56
        s_load_dwordx2 s[32:33], s[0:1], 64
        s_load_dwordx2 s[36:37], s[0:1], 72
        s_load_dwordx2 s[40:41], s[0:1], 80
        v_lshrrev_b32 v1, 6, v0
        v_and_b32 v0, 63, v0
        v_readfirstlane_b32 {W}, v1
        s_and_b32 {X}, s2, 7
        s_lshr_b32 {II}, s2, 3
        ''')
        if self.timers:
            a(f'''
            v_mov_b32 v71, 0
            s_memrealtime s[98:99]
            s_memtime {TM}
            s_waitcnt lgkmcnt(0)
            v_writelane_b32 v71, s96, 0
            v_writelane_b32 v71, s98, 63
            ''')
        sizes = [SZ, SZ, 5120, SZ, 1280, SZ, 640*1728*2, 640*1728*2, 640*1728*2, SZ, WS_SIZE]
        for i, z in enumerate(sizes):
            a(f's_mov_b32 s{4*i+6}, {z}\ns_mov_b32 s{4*i+7}, 0x00020000')
        a(f'''
        v_lshlrev_b32 v1, 4, v0
        v_mul_u32_u24 v16, 205, v0
        v_lshrrev_b32 v16, 11, v16
        v_mul_u32_u24 v17, 10, v16
        v_sub_u32 v17, v0, v17
        s_lshr_b32 {t0}, {II}, 3
        s_add_u32 {t0}, {t0}, 1
        s_and_b32 {t0}, {t0}, 3
        s_lshl_b32 {t1}, {X}, 2
        s_add_u32 {T}, {t1}, {t0}
        s_and_b32 {S}, {II}, 7
        s_lshl_b32 {t0}, {T}, 6
        s_lshl_b32 {t1}, {W}, 4
        s_add_u32 {t0}, {t0}, {t1}
        v_lshlrev_b32 v18, 2, v16
        v_add_u32 v18, {t0}, v18           ; t
        s_mul_i32 {t2}, {S}, 160
        v_mul_u32_u24 v19, 1280, v18
        v_lshl_add_u32 v19, v17, 4, v19
        v_add_u32 v19, {t2}, v19
        v_subrev_u32 v20, 3840, v19
        v_cmp_eq_u32 vcc, 0, v18
        v_mov_b32 v21, 0x40000000
        s_mul_i32 {t2}, {S}, 640
        v_cndmask_b32 v20, v20, v21, vcc
        v_lshlrev_b32 v21, 6, v17
        v_add_u32 v21, {t2}, v21
        s_waitcnt lgkmcnt(0)
        s_load_dword {TAG}, s[44:45], 0
        s_mov_b32 exec_lo, -1
        s_mov_b32 exec_hi, 0xff
        ''')
        for r in range(3): a(f'buffer_load_dwordx4 v[{72+4*r}:{75+4*r}], v20, {K_}, 0 offen offset:{1280*r}')
        for r in range(4): a(f'buffer_load_dwordx4 v[{84+4*r}:{87+4*r}], v19, {K_}, 0 offen offset:{1280*r}')
        for r in range(4): a(f'buffer_load_dwordx4 v[{100+4*r}:{103+4*r}], v19, {V_}, 0 offen offset:{1280*r}')
        for r in range(4): a(f'buffer_load_dwordx4 v[{116+4*r}:{119+4*r}], v21, {SK_}, 0 offen offset:{16*r}')
        a('s_mov_b64 exec, -1')
        a(f'''
        s_and_b32 {t0}, {X}, 1
        s_lshl_b32 {t0}, {t0}, 2
        s_and_b32 {t1}, {II}, 3
        s_add_u32 {G}, {t0}, {t1}
        s_lshr_b32 {t0}, {X}, 1
        s_mul_i32 {t0}, {t0}, 7
        s_lshr_b32 {t1}, {II}, 2
        s_add_u32 {FS}, {t0}, {t1}
        s_mov_b32 {ROLE}, 0
        s_cmp_lt_u32 {FS}, 27
        s_cselect_b32 {ROLE}, 1, 0
        s_cmp_lt_u32 {II}, 20
        s_cselect_b32 {t0}, 2, 0
        s_or_b32 {ROLE}, {ROLE}, {t0}
        s_cmp_ge_u32 {II}, 28
        s_cselect_b32 {ROLE}, 4, {ROLE}
        s_mov_b32 s56, s44
        s_mov_b32 s57, s45
        s_mov_b32 s58, {WS_SIZE}
        s_mov_b32 s59, 0x00020000
        s_mov_b32 s60, s44
        s_mov_b32 s61, s45
        s_mov_b32 s62, 0
        s_mov_b32 s63, 0x00020000
        s_bitcmp1_b32 {W}, 0
        s_cselect_b32 s64, s32, s28
        s_cselect_b32 s65, s33, s29
        s_mov_b32 s66, {640*1728*2}
        s_mov_b32 s67, 0x00020000
        s_mul_i32 {sMA}, {W}, 10240
        s_mul_i32 {sMH}, {W}, {LHS}
        s_add_u32 {sMH}, {sMH}, {L_H}
        s_mov_b32 s28, s44
        s_mov_b32 s29, s45
        s_cmp_eq_u32 {W}, 3
        s_cselect_b32 s30, 0, {WS_SIZE}
        s_cselect_b32 {sDUP}, 1, 2
        s_lshl_b32 {sDUP}, {sDUP}, 11
        s_sub_u32 {sHinc}, {32*HST - 8192}, {sDUP}
        s_sub_u32 {t0}, {II}, 20
        s_lshl_b32 {sKSG}, {t0}, 3
        s_add_u32 {sKSG}, {sKSG}, {X}
        s_cmp_lt_u32 {sKSG}, 54
        s_cbranch_scc0 NOPREP
        s_or_b32 {ROLE}, {ROLE}, 8
        ''')
        a('NOPREP:')
        self.w1_setup()
        a(f's_bitcmp1_b32 {ROLE}, 3\ns_cbranch_scc0 P0_NOP')
        for y in range(5):
            a(f'''
            v_add_u32 v22, {64*y}, v0
            v_mul_u32_u24 v23, 3277, v22
            v_lshrrev_b32 v23, 16, v23
            v_mul_u32_u24 v24, {1280 - 320}, v23
            v_lshl_add_u32 v{160+y}, v22, 4, v24
            ''')
        a(f'''
        s_mul_i32 {t0}, {sKSG}, {32*1280}
        s_mul_i32 {t1}, {W}, 320
        s_add_u32 {t0}, {t0}, {t1}
        s_add_u32 {t1}, {t0}, {16*1280}
        s_mov_b32 m0, {sMA}
        ''')
        for h in range(2):
            for y in range(5): a(f'buffer_load_dwordx4 v{160+y}, {WD_}, {t1 if h else t0} offen lds\ns_add_u32 m0, m0, 1024')
        a('P0_NOP:')
        a(f'''
        s_bitcmp1_b32 {ROLE}, 1
        s_cbranch_scc0 P0_NOH
        s_mul_i32 {t0}, {X}, 20
        s_add_u32 {t0}, {t0}, {II}
        s_lshl_b32 {t0}, {t0}, 2
        s_add_u32 {t0}, {t0}, {W}
        s_lshl_b32 {t1}, {t0}, 12
        v_add_u32 v38, {t1}, v1
        v_subrev_u32 v39, 8, v38
        s_lshl_b32 {t1}, {t0}, 1
        v_mov_b32 v36, {t1}
        v_mov_b32 v40, 0
        v_mov_b32 v41, 0
        s_mov_b64 exec, -2
        buffer_load_dwordx2 v[40:41], v39, {H_}, 0 offen
        s_mov_b64 exec, -1
        ''')
        for y in range(4):
            if y: a(f'buffer_load_dwordx2 v[{40+6*y}:{41+6*y}], v39, {H_}, 0 offen offset:{1024*y}')
            a(f'buffer_load_dwordx4 v[{42+6*y}:{45+6*y}], v38, {H_}, 0 offen offset:{1024*y}')
        a(f'''
        buffer_load_ushort v37, v36, {D_}, 0 offen
        P0_NOH:
        s_bitcmp1_b32 {ROLE}, 0
        s_cbranch_scc0 P0_NOW
        ''')
        self.w1_issue(16)
        a('P0_NOW:')
        a(f'''
        v_and_b32 v22, 31, v0              ; t
        v_lshrrev_b32 v23, 5, v0           ; h
        v_lshrrev_b32 v24, 3, v22
        v_mul_u32_u24 v24, 10240, v24
        v_and_b32 v25, 7, v22
        v_lshl_add_u32 v24, v25, 7, v24
        v_bfe_u32 v25, v22, 1, 3           ; swz
        v_xor_b32 v25, v25, v23
        ''')
        for q in range(4):
            a(f'v_xor_b32 v26, {2*q}, v25\nv_lshl_add_u32 v{2+q}, v26, 4, v24')
        a(f'''
        v_add_u32 v6, 4096, v1
        v_add_u32 v7, {sMH}, v1
        v_lshrrev_b32 v24, 4, v22
        v_mul_u32_u24 v24, {HST}, v24
        v_lshl_add_u32 v24, v23, 8, v24
        v_and_b32 v25, 15, v0
        v_lshl_add_u32 v8, v25, 4, v24
        s_cmp_eq_u32 {W}, 3
        s_cselect_b32 {t0}, 23, 27
        v_min_u32 v9, {t0}, v0
        v_lshlrev_b32 v9, 7, v9
        v_and_b32 v24, 1, v0
        v_bfe_u32 v26, v0, 1, 1
        v_lshl_add_u32 v24, v26, 3, v24
        s_lshl_b32 {t0}, {G}, 2
        s_lshr_b32 {t1}, {W}, 1
        s_add_u32 {t0}, {t0}, {t1}
        s_lshl_b32 {t0}, {t0}, 2
        s_and_b32 {t1}, {W}, 1
        s_lshl_b32 {t1}, {t1}, 1
        s_add_u32 {t0}, {t0}, {t1}
        v_add_u32 v24, {t0}, v24
        v_lshlrev_b32 v10, 7, v24
        v_mul_u32_u24 v24, 336, v25
        v_lshrrev_b32 v26, 4, v0
        v_lshl_add_u32 v24, v26, 4, v24
        s_mul_i32 {t0}, {W}, 5376
        s_add_u32 {t0}, {t0}, {L_R}
        v_add_u32 v11, {t0}, v24
        s_lshl_b32 {t0}, {W}, 2
        v_add_u32 v24, {t0}, v16
        v_min_u32 v24, 15, v24
        v_mul_u32_u24 v26, 336, v24
        v_lshl_add_u32 v26, v17, 5, v26
        v_add_u32 v12, {L_R}, v26
        v_mul_u32_u24 v26, 1280, v24
        v_lshl_add_u32 v13, v17, 4, v26
        s_waitcnt lgkmcnt(0)
        s_mul_i32 {TAG}, {TAG}, 0x9E3779B1
        s_add_u32 {TAG}, {TAG}, 0x7F4A7C15
        v_mov_b32 v15, {TAG}
        s_mov_b32 s100, {hex(f2u(AL*AL/0.044715))}
        s_mov_b32 s101, {hex(f2u(1/(AL*AL)))}
        ''')

    def p0(self):
        a = self.a
        a(f'''
        s_cmp_eq_u32 {ROLE}, 9
        s_cbranch_scc1 P0_W26
        s_cmp_eq_u32 {ROLE}, 3
        s_cbranch_scc1 P0_W25
        s_cmp_eq_u32 {ROLE}, 1
        s_cbranch_scc1 P0_W16
        s_cmp_eq_u32 {ROLE}, 8
        s_cbranch_scc1 P0_W10
        s_waitcnt vmcnt(0)
        P0_W10:
        s_waitcnt vmcnt(10)
        P0_W16:
        s_waitcnt vmcnt(16)
        P0_W25:
        s_waitcnt vmcnt(25)
        P0_W26:
        s_waitcnt vmcnt(26)
        ''')
        self.stamp(1)
        a(f'''
        s_mov_b32 {t2}, 0x05040100
        s_mov_b32 {t3}, 0x07060302
        s_lshl_b32 {t0}, {W}, 1
        v_lshrrev_b32 v22, 1, v16
        v_add_u32 v22, {t0}, v22
        v_and_b32 v23, 7, v17
        v_xor_b32 v22, v22, v23
        v_lshlrev_b32 v22, 4, v22
        v_and_b32 v23, 1, v16
        v_lshl_add_u32 v22, v23, 3, v22
        v_lshl_add_u32 v22, v17, 10, v22
        v_add_u32 v22, {L_X}, v22
        s_mov_b32 exec_lo, -1
        s_mov_b32 exec_hi, 0xff
        ''')
        for j in range(8):
            d = j >> 1; sel = t3 if j & 1 else t2
            P = 132; U = 140 + 8 * (j & 1); VV = 156
            for s_ in range(1, 7):
                a(f'v_perm_b32 v{P+s_}, v{72+4*(s_-1)+d}, v{72+4*s_+d}, {sel}')
            for r in range(4):
                a(f'v_dot2_f32_bf16 v{U+r}, v{P+r+1}, v{117+2*j}, 0')
            for r in range(4):
                a(f'v_dot2_f32_bf16 v{U+r}, v{P+r+3}, v{116+2*j}, v{U+r}')
            for r in range(4):
                if j & 1: a(f'v_and_b32 v{VV+r}, 0xffff0000, v{100+4*r+d}')
                else: a(f'v_lshlrev_b32 v{VV+r}, 16, v{100+4*r+d}')
            a(f'''
            v_pk_mul_f32 v[{U}:{U+1}], v[{U}:{U+1}], v[{VV}:{VV+1}]
            v_pk_mul_f32 v[{U+2}:{U+3}], v[{U+2}:{U+3}], v[{VV+2}:{VV+3}]
            v_cvt_pk_bf16_f32 v{U+4}, v{U}, v{U+1}
            v_cvt_pk_bf16_f32 v{U+5}, v{U+2}, v{U+3}
            ds_write_b64 v22, v[{U+4}:{U+5}] offset:{128*j}
            ''')
        a(f'''
        s_mov_b64 exec, -1
        s_mul_i32 {t0}, {W}, 20
        v_lshrrev_b32 v22, 3, v0
        v_add_u32 v22, {t0}, v22
        v_and_b32 v23, 7, v0
        ''')
        for y in range(3):
            a(f'''
            v_add_u32 v24, {8*y}, v22
            v_bfe_u32 v25, v24, 3, 3
            v_xor_b32 v25, v25, v23
            v_lshlrev_b32 v25, 4, v25
            v_lshl_add_u32 v25, v24, 7, v25
            v_add_u32 v{26+y}, {L_X}, v25
            ''')
        a(f'''
        s_mul_i32 {t0}, {S}, 80
        v_add_u32 v22, {t0}, v22
        v_lshlrev_b32 v22, 12, v22
        v_lshl_add_u32 v22, v23, 4, v22
        s_lshl_b32 {t0}, {T}, 7
        s_add_u32 {t0}, {t0}, {UT}
        s_add_u32 {t1}, {t0}, 0x8000
        s_add_u32 {t2}, {t0}, 0x10000
        s_waitcnt lgkmcnt(0)
        ''')
        self.stamp(55)
        a(f'''
        s_barrier
        ds_read_b128 v[72:75], v26
        ds_read_b128 v[76:79], v27
        s_mov_b32 exec_hi, 0
        ds_read_b128 v[80:83], v28
        s_mov_b32 exec_hi, -1
        s_waitcnt lgkmcnt(2)
        buffer_store_dwordx4 v[72:75], v22, {WS_}, {t0} offen sc1
        s_waitcnt lgkmcnt(1)
        buffer_store_dwordx4 v[76:79], v22, {WS_}, {t1} offen sc1
        s_waitcnt lgkmcnt(0)
        s_mov_b32 exec_hi, 0
        buffer_store_dwordx4 v[80:83], v22, {WS_}, {t2} offen sc1
        s_mov_b32 exec_hi, -1
        s_lshl_b32 {t4}, {S}, 2
        s_add_u32 {t4}, {t4}, {W}
        s_lshl_b32 {t4}, {t4}, 5
        s_add_u32 {t4}, {t4}, {T}
        s_lshl_b32 {t4}, {t4}, 7
        s_add_u32 {t4}, {t4}, {FP0}
        ''')

    def w1_setup(self):
        self.a(f'''
        v_lshrrev_b32 v66, 3, v0
        v_bfe_u32 v67, v0, 4, 1
        v_lshlrev_b32 v67, 1, v67
        s_and_b32 {t0}, {W}, 1
        s_lshl_b32 {t0}, {t0}, 2
        v_or_b32 v67, {t0}, v67
        v_and_b32 v68, 7, v0
        v_xor_b32 v67, v67, v68
        v_mul_u32_u24 v66, 3456, v66
        v_lshl_add_u32 v64, v67, 4, v66
        s_lshr_b32 {t0}, {W}, 1
        s_mul_i32 {t0}, {t0}, {8*3456}
        s_lshl_b32 {sW1o}, {FS}, 7
        s_add_u32 {sW1o}, {sW1o}, {t0}
        v_lshrrev_b32 v66, 4, v0
        v_and_b32 v67, 1, v66              ; mat
        v_lshrrev_b32 v66, 1, v66          ; h
        v_lshlrev_b32 v66, 11, v66
        v_lshl_add_u32 v66, v67, 10, v66
        v_bfe_u32 v68, v0, 2, 2            ; r
        v_lshl_add_u32 v66, v68, 7, v66
        v_lshrrev_b32 v68, 1, v68
        v_lshl_add_u32 v68, v67, 1, v68    ; sigma
        v_xor_b32 v68, {W}, v68
        v_lshl_add_u32 v66, v68, 5, v66
        v_and_b32 v68, 3, v0
        v_lshl_add_u32 v66, v68, 3, v66
        v_add_u32 v65, {L_W1}, v66
        ''')
    def w1_issue(self, nks):
        a = self.a
        a(f's_lshl_b32 {t0}, {W}, 10\ns_add_u32 m0, {t0}, {L_W1}')
        for i in range(nks):
            a(f'''
            buffer_load_dwordx4 v64, {W1_}, {sW1o} offen lds
            s_add_u32 m0, m0, 4096
            s_add_u32 {sW1o}, {sW1o}, {16*3456}
            ''')
    def w1_consume(self, ks0, nks, vm=0):
        a = self.a
        a('s_barrier' if vm is None else f's_waitcnt vmcnt({vm})\ns_barrier')
        for i in list(range(3, nks)) + [0, 1, 2]:
            r = 72 + 4 * (ks0 + i)
            a(f'ds_read_b64_tr_b16 v[{r}:{r+1}], v65 offset:{4096*i}')
            a(f'ds_read_b64_tr_b16 v[{r+2}:{r+3}], v65 offset:{4096*i+512}')
        a('s_waitcnt lgkmcnt(0)\ns_barrier')
    @staticmethod
    def wd_freg(f):
        if f < 6: return f'v[{232+4*f}:{235+4*f}]'
        p = [0, 1, 2, 3, 4, 6, 5, 7][(f - 6) >> 3]; k = (f - 6) & 7
        r = 4 * (8*k + p) if k < 4 else 128 + 4 * (8*(k-4) - p + 7)
        return f'a[{r}:{r+3}]'
    def wd_reg(self, ks, j): return self.wd_freg(ks * 5 + j)
    def wd_prep(self):
        a = self.a
        a(f'''
        v_lshrrev_b32 v70, 5, v0
        v_bfe_u32 v14, v0, 4, 1
        v_lshl_add_u32 v70, v70, 2, v14
        v_bfe_u32 v14, v0, 2, 2
        v_lshl_add_u32 v70, v70, 2, v14
        v_mul_u32_u24 v70, 320, v70
        v_and_b32 v14, 3, v0
        v_lshl_add_u32 v70, v14, 3, v70
        v_add_u32 v70, {sMA}, v70
        s_mul_i32 {t0}, {W}, 108
        s_add_u32 {t0}, {t0}, {sKSG}
        s_mul_i32 {t0}, {t0}, 5120
        s_add_u32 {t0}, {t0}, {WF}
        s_lshl_b32 {t5}, {sKSG}, 2
        s_add_u32 {t5}, {t5}, {W}
        s_lshl_b32 {t5}, {t5}, 7
        s_add_u32 {t5}, {t5}, {FW}
        ''')
        ds = DS(a)
        for q in range(10):
            for e in range(2):
                ds.op(f'ds_read_b64_tr_b16 v[{136+4*q+2*e}:{137+4*q+2*e}], v70 offset:{160*(q//5) + 32*(q%5) + 2560*e}', (q, e))
        for q in range(10):
            ds.need((q, 1))
            j = q % 5
            if j == 4: a(f's_add_u32 {t0}, {t0}, 4096')
            a(f'buffer_store_dwordx4 v[{136+4*q}:{139+4*q}], v1, {WS_}, {t0} offen offset:{1024*(j&3)} sc1')
            if q == 4: a(f's_add_u32 {t0}, {t0}, {54*5120 - 4096}')
    def wd_init(self):
        self.a(f'''
        s_mul_i32 {t0}, {W}, 14
        v_add_u32 v70, {t0}, v0
        s_add_u32 {t1}, {t0}, 13
        s_min_u32 {t1}, {t1}, 53
        v_min_u32 v70, {t1}, v70
        v_lshlrev_b32 v70, 9, v70
        s_lshr_b32 {t3}, {S}, 1
        s_lshl_b32 {t3}, {t3}, 7
        s_add_u32 {t3}, {t3}, {FW}
        s_mul_i32 {sWDo}, {S}, 54
        s_add_u32 {sWDo}, {sWDo}, {t0}
        s_mul_i32 {sWDo}, {sWDo}, 5120
        s_add_u32 {sWDo}, {sWDo}, {WF}
        ''')
    def wd_ld(self, f):
        s_ = f'buffer_load_dwordx4 {self.wd_freg(f)}, v1, {WS3 if f >= 60 else WS_}, {sWDo} offen offset:{1024*(f&3)} sc1'
        if f & 3 == 3: s_ += f'\ns_add_u32 {sWDo}, {sWDo}, 4096'
        return s_
    def wd_subs(self):
        a = self.a
        a('WD_ALL:')
        self.wd_init(); self.poll('v70', t3)
        for f in range(70): a(self.wd_ld(f))
        a(f's_sub_u32 {sWDo}, {sWDo}, {4096 * (70 // 4 - NWC // 4)}\ns_setpc_b64 {RET2}')

    def hbuild(self):
        a = self.a
        a(f'''
        s_mul_i32 {t0}, {W}, {L_CW}
        s_add_u32 {t1}, {t0}, 4080
        v_sub_u32 v38, {t1}, v1
        v_subrev_u32 v38, 3072, v38
        s_mov_b32 {t2}, 0xffff
        v_mov_b32 v16, 0
        v_mov_b32 v17, 0
        v_mov_b32 v18, 0
        v_mov_b32 v19, 0
        v_lshrrev_b32 v39, 1, v1
        s_add_u32 {t1}, {t0}, {L_U}
        v_add_u32 v39, {t1}, v39
        ds_write_b64 v39, v[16:17]
        v_bfe_u32 v39, v0, 1, 2
        v_mul_u32_u24 v39, 4160, v39
        v_and_b32 v36, 1, v0
        v_lshl_add_u32 v39, v36, 4, v39
        s_add_u32 {t1}, {t0}, 4096
        v_add_u32 v39, {t1}, v39
        ds_write_b128 v39, v[16:19]
        ''')
        a(f's_lshl_b32 {t0}, {W}, 10\ns_add_u32 m0, {t0}, {L_W1}')
        for y in range(4):
            D = lambda k: f'v{42+6*y+k}'
            for s_ in range(4):
                r = 16 + 4 * s_
                for o in range(4):
                    if s_ == 0: a(f'v_alignbit_b32 v{r+o}, {D(3-o)}, {D(3-o)}, 16')
                    if s_ == 1: a(f'v_bfi_b32 v{r+o}, {t2}, {D(3-o)}, {D(2-o)}')
                    if s_ == 2: a(f'v_alignbit_b32 v{r+o}, {D(2-o)}, {D(2-o)}, 16')
                    if s_ == 3: a(f'v_bfi_b32 v{r+o}, {t2}, {D(2-o)}, {D(1-o)}')
                a(f'ds_write_b128 v38, v[{r}:{r+3}] offset:{4160*s_ + 3072 - 1024*y}')
                a(f'buffer_load_dwordx4 v64, {W1_}, {sW1o} offen lds\ns_add_u32 m0, m0, 4096\ns_add_u32 {sW1o}, {sW1o}, {16*3456}')
    def hbuild2(self):
        a = self.a
        a(f'''
        v_and_b32 v16, 15, v0              ; m / n
        v_lshrrev_b32 v17, 4, v0           ; q
        v_lshrrev_b32 v18, 3, v16
        v_add_u32 v18, 2, v18
        v_cmp_eq_u32 vcc, v17, v18
        v_and_b32 v19, 1, v0
        v_lshlrev_b32 v19, 4, v19
        v_lshlrev_b32 v37, v19, v37
        v_cndmask_b32 v37, 0, v37, vcc
        v_bfe_u32 v19, v0, 1, 2
        s_mul_i32 {t0}, {W}, {L_CW}
        ''')
        for d in range(4):
            a(f'v_cmp_eq_u32 vcc, {d}, v19\ns_nop 1\nv_cndmask_b32 v{32+d}, 0, v37, vcc')
        a(f'''
        v_sub_u32 v18, 3, v16
        v_and_b32 v18, 3, v18
        v_mul_u32_u24 v18, 4160, v18
        v_lshl_add_u32 v18, v17, 4, v18
        v_lshrrev_b32 v19, 2, v16
        v_lshlrev_b32 v19, 3, v19
        v_sub_u32 v18, v18, v19
        s_add_u32 {t1}, {t0}, 24
        v_add_u32 v36, {t1}, v18
        v_lshlrev_b32 v18, 5, v16
        v_lshl_add_u32 v18, v17, 4, v18
        s_add_u32 {t1}, {t0}, {L_U + 32}
        v_add_u32 v39, {t1}, v18
        s_lshl_b32 {t1}, {W}, 2
        v_add_u32 v18, {t1}, v17
        v_xor_b32 v18, v18, v16
        v_lshlrev_b32 v18, 3, v18
        v_lshl_add_u32 v18, v16, 7, v18
        v_add_u32 v66, {L_X}, v18
        v_bfe_u32 v18, v0, 1, 1
        v_lshl_add_u32 v18, v17, 1, v18
        s_lshl_b32 {t1}, {W}, 3
        v_add_u32 v18, {t1}, v18
        v_bfe_u32 v19, v0, 2, 2
        v_and_b32 v20, 1, v0
        v_lshl_add_u32 v19, v19, 2, v20
        v_and_b32 v20, 15, v18
        v_xor_b32 v19, v19, v20
        v_lshlrev_b32 v19, 3, v19
        v_lshl_add_u32 v19, v18, 7, v19
        v_add_u32 v67, {L_X}, v19
        v_xor_b32 v69, 16, v67
        v_lshrrev_b32 v18, 3, v0
        v_mul_u32_u24 v18, 20480, v18
        v_and_b32 v19, 7, v0
        v_lshl_add_u32 v68, v19, 4, v18
        v_and_b32 v37, 31, v0
        v_lshlrev_b32 v37, 7, v37
        ''')

    def conv(self):
        a = self.a; P = self.P
        a(f'''
        s_mul_i32 {t0}, {II}, 52
        s_lshr_b32 {t0}, {t0}, 8           ; i/5
        s_lshl_b32 {t1}, {X}, 2
        s_add_u32 {t0}, {t0}, {t1}
        s_lshl_b32 {t0}, {t0}, 12
        s_add_u32 {t4}, {t0}, {FP0}
        buffer_load_dword v14, v37, {WS_}, {t4} offen sc1
        ''')
        for b in range(32):
            a(f'ds_read_b64 a[{4*b}:{4*b+1}], v36 offset:{64*(63-b)}')
            a(f'ds_read_b64 a[{4*b+2}:{4*b+3}], v36 offset:{64*(63-b)+8}')
        self.wd_init()
        self.a_init()
        a(f'''
        s_mul_i32 {t1}, {X}, 20
        s_add_u32 {t1}, {t1}, {II}         ; cw
        s_lshl_b32 {t2}, {t1}, 2
        s_add_u32 {t2}, {t2}, {W}
        s_lshl_b32 {t2}, {t2}, 12
        s_add_u32 {t2}, {t2}, {UT}
        s_mul_i32 {t0}, {W}, {L_CW}
        s_add_u32 m0, {t0}, {L_U + 512}
        s_mul_i32 {t0}, {W}, 1280
        s_add_u32 {t0}, {t0}, {t1}
        s_lshl_b32 {t0}, {t0}, 7
        s_add_u32 {sO1}, {t0}, {YB}
        s_mul_i32 {t0}, {W}, 160
        s_add_u32 {t0}, {t0}, {t1}
        s_lshl_b32 {t0}, {t0}, 7
        s_add_u32 {sO2}, {t0}, {FY}
        ''')
        self.stamp(3)
        a('s_waitcnt vmcnt(0)')
        self.check(self.spin('v37', t4))
        self.stamp(4)
        for y in range(4):
            a(f'buffer_load_dwordx4 v1, {WS_}, {t2} offen offset:{1024*y} sc1 lds')
        a('s_barrier')
        for i in range(16):
            a(f'ds_read_b64_tr_b16 v[{136+4*i}:{137+4*i}], v65 offset:{4096*i}')
            a(f'ds_read_b64_tr_b16 v[{138+4*i}:{139+4*i}], v65 offset:{4096*i+512}')
        a('s_waitcnt vmcnt(0) lgkmcnt(0)')
        self.stamp(5)
        ds = DS(a); vm = VM(a)
        Areg = {b: f'a[{4*b}:{4*b+3}]' for b in range(32)}
        Breg = {e: f'a[{128+4*(e+7)}:{131+4*(e+7)}]' for e in range(-7, 25)}
        def rng(r):
            m = re.fullmatch(r'([av])\[(\d+):(\d+)\]', r); return m.group(1), int(m.group(2))
        def ldA(b):
            k, r = rng(Areg[b])
            return [(f'ds_read_b64 {k}[{r}:{r+1}], v36 offset:{64*(63-b)}', None),
                    (f'ds_read_b64 {k}[{r+2}:{r+3}], v36 offset:{64*(63-b)+8}', ('A', b))]
        def ldB(e): return [(f'ds_read_b128 {Breg[e]}, v39 offset:{64*(e+7)}', ('B', e))]
        for b in range(32): ds.done.add(('A', b))
        acc = {0: 16, 1: 20, 2: 24, 3: 28, 4: 16, 5: 20, 6: 48, 7: 52}
        def mf(j, b, e):
            if b is not None: ds.need(('A', b))
            ds.need(('B', e))
            c = f'v[{acc[j]}:{acc[j]+3}]'
            if b is None: a(f'v_mfma_f32_16x16x32_bf16 {c}, v[32:35], {Breg[e]}, 0')
            else: a(f'v_mfma_f32_16x16x32_bf16 {c}, {Areg[b]}, {Breg[e]}, {c}')
        def run(mfs, fill, per=1):
            fill = list(fill)
            for m_ in mfs:
                mf(*m_)
                for _ in range(per):
                    if fill: fill.pop(0)()
            while fill: fill.pop(0)()
        L = lambda items: [(lambda it=it: ds.op(*it)) for it in items]
        nop = lambda: None
        def epi(c, tiles, tmp):
            F = []
            buf = (c & 1) * 4096
            for jj, j in enumerate(tiles):
                r = acc[j]
                F.append(lambda r=r, jj=jj: a(f'v_cvt_pk_bf16_f32 v{tmp+2*jj}, v{r}, v{r+1}\nv_cvt_pk_bf16_f32 v{tmp+2*jj+1}, v{r+2}, v{r+3}'))
                F.append(lambda jj=jj: ds.op(f'ds_write_b64 v66, v[{tmp+2*jj}:{tmp+2*jj+1}] offset:{buf + 2048*jj}', ('W', c, jj)))
            return F
        def epi2(c, tmp):
            buf = (c & 1) * 4096
            F = [lambda: ds.op(f'ds_read_b64_tr_b16 v[{tmp}:{tmp+1}], v67 offset:{buf}', None),
                 lambda: ds.op(f'ds_read_b64_tr_b16 v[{tmp+2}:{tmp+3}], v69 offset:{buf}', ('R', c))]
            return F
        def ystore(c, tmp):
            def f():
                ds.need(('R', c))
                vm.op(f'buffer_store_dwordx4 v[{tmp}:{tmp+3}], v68, {WS_}, {sO1} offen sc1\ns_add_u32 {sO1}, {sO1}, {32*20480}', ('Y', c))
            return f
        def bar(tag):
            def f():
                ds.need(tag); a('s_barrier')
            return f
        def yflag(c):
            def f():
                vm.need(('Y', c)); vm.op(self.flag_s(sO2) + f'\ns_add_u32 {sO2}, {sO2}, {640*128}')
            return f
        V = lambda items: [(lambda it=it: vm.op(*it)) for it in items]
        wdl = lambda f0, f1: V([(self.wd_ld(f), ('WD', f)) for f in range(f0, f1)])
        def mix(x, y):
            o = []
            while x or y:
                if x: o.append(x.pop(0))
                if y: o.append(y.pop(0))
            return o
        def w1i(n):
            F = [lambda: a(f's_lshl_b32 {t0}, {W}, 10\ns_add_u32 m0, {t0}, {L_W1}')]
            for i in range(n):
                F.append(lambda: vm.op(f'buffer_load_dwordx4 v64, {W1_}, {sW1o} offen lds\ns_add_u32 m0, m0, 4096\ns_add_u32 {sW1o}, {sW1o}, {16*3456}', 'W1'))
            return F
        def w1c(ks0, n):
            F = []
            for i in range(n):
                r = 72 + 4 * (ks0 + i)
                o = 4096 * ((ks0 + i) & 15)
                F += L([(f'ds_read_b64_tr_b16 v[{r}:{r+1}], v65 offset:{o}', None),
                        (f'ds_read_b64_tr_b16 v[{r+2}:{r+3}], v65 offset:{o+512}', ('W1', ks0 + i))])
            return F
        l0 = []
        for r in range(8): l0 += ldB(-r) + ldB(8 - r)
        l1 = []
        for r in range(8): l1 += ldB(16 - r) + ldB(24 - r)
        for it in l0[:4]: ds.op(*it)
        m0_ = [(0, None, 0), (1, None, 8)]
        for r in range(8): m0_ += [(0, r, -r), (1, r, 8 - r), (1, 8 + r, -r)]
        run(m0_, L(l0[4:] + l1))
        self.stamp(6)
        slots = [f'v[{200+4*k}:{203+4*k}]' for k in range(8)]
        def extras(r, sl):
            it = []
            for k in range(4):
                Areg[8*(4+k) + r] = sl[k]; Breg[8*(4+k) - r] = sl[4+k]
            for k in range(4): it += ldB(8*(4+k) - r) + ldA(8*(4+k) + r)
            return it
        m1 = [(2, None, 16), (3, None, 24)]
        for r in range(8):
            for j in (2, 3):
                for be in range(j + 1): m1.append((j, 8*be + r, 8*(j-be) - r))
        F = [nop, nop] + epi(0, (0, 1), 56) + [nop, nop, bar(('W', 0, 1))] + epi2(0, 60) + [nop]*4 + [ystore(0, 60)]
        F += V([(f'buffer_load_dword v14, v70, {WS_}, {t3} offen sc1', 'FW')])
        F += mix(L(extras(0, slots)), w1i(8))
        F += [nop] * (len(m1) - len(F) - 1) + [yflag(0)]
        run(m1, F)
        self.stamp(7)
        slots1 = [f'v[{232+4*k}:{235+4*k}]' for k in range(6)] + ['v[40:43]', 'v[44:47]']
        for r in range(8):
            mm = []
            prs = [(be, ga) for be in range(8) for ga in range(8) if 4 <= be + ga <= 7]
            prs.sort(key=lambda p: max(p))
            if r == 0:
                mm += [(j, None, 8*j) for j in (4, 5, 6, 7)]
            mm += [(be + ga, 8*be + r, 8*ga - r) for be, ga in prs]
            F = []
            if r == 0: F += [nop, nop] + epi(1, (2, 3), 56) + [nop, nop, bar(('W', 1, 1))] + epi2(1, 60) + [nop]*2 + [ystore(1, 60)]
            if r < 7:
                if r == 0: sl = slots1
                else:
                    p = r - 1
                    sl = [Areg[8*k + p] for k in range(4)] + [Breg[8*k - p] for k in range(4)]
                F += L(extras(r + 1, sl))
            if r == 2:
                def fw():
                    vm.need('FW'); self.check(self.spin('v70', t3))
                F = [fw, yflag(1)] + mix(F, wdl(0, 6))
            if r == 3: F = mix(F, wdl(6, 14))
            if r == 4: F = mix(F, wdl(14, 22))
            if r == 5: F = [lambda: (vm.need('W1'), a('s_barrier'))] + mix(F + w1c(32, 4), wdl(22, 30))
            if r == 6: F = mix(F + w1c(36, 4), V([(f'buffer_load_dword v14, v10, {WS_}, {sPA} offen sc1', 'PA')]) + wdl(30, NWC))
            if r == 7:
                def ac():
                    vm.need('PA'); a(self.acheck()); a('s_waitcnt lgkmcnt(0)\ns_barrier'); ds.done |= set(ds.q); ds.q = []
                F = [nop] * P.get('c7', 4) + [ac] + [f_ for v_ in V([(o, 'A') for o in self.a_dma(L_A, sAD, WSD)]) for f_ in (v_, nop)]
            run(mm, F)
        self.stamp(8)
        for f in epi(2, (4, 5), 56) + epi(3, (6, 7), 60): f()
        bar(('W', 3, 1))()
        for f in epi2(2, 56) + epi2(3, 60) + [ystore(2, 56), ystore(3, 60)]: f()
        self.conv_q = vm.q
        self.stamp(9)

    def ln_setup(self):
        a = self.a
        a(f'''
        s_lshl_b32 {t0}, {X}, 2
        s_add_u32 {G}, {t0}, {II}
        s_sub_u32 {G}, {G}, 28             ; TL
        v_lshrrev_b32 v16, 4, v0
        s_lshl_b32 {t0}, {W}, 2
        v_add_u32 v21, {t0}, v16
        v_and_b32 v17, 15, v0              ; kappa
        v_mul_u32_u24 v18, 1280, v21
        v_lshl_add_u32 v8, v17, 4, v18
        v_mul_u32_u24 v18, 160, v21
        ''')
        for u in range(5):
            a(f'''
            v_add_u32 v19, {16*u}, v17
            v_mul_u32_u24 v20, 205, v19
            v_lshrrev_b32 v20, 11, v20
            v_mul_u32_u24 v20, {2560-160}, v20
            v_lshl_add_u32 v20, v19, 4, v20
            v_add_u32 v{2+u}, v20, v18
            ''')
        a(f'''
        v_lshrrev_b32 v18, 2, v17
        v_lshlrev_b32 v18, 10, v18
        v_and_b32 v19, 3, v0
        v_lshl_add_u32 v18, v19, 6, v18
        v_lshl_add_u32 v18, v16, 4, v18
        s_and_b32 {t0}, {W}, 1
        s_lshl_b32 {t0}, {t0}, 8
        s_lshr_b32 {t1}, {W}, 1
        s_lshl_b32 {t1}, {t1}, 3
        s_add_u32 {t0}, {t0}, {t1}
        v_add_u32 v10, {t0}, v18
        v_bfe_u32 v18, v0, 2, 2
        v_lshrrev_b32 v20, 5, v0
        v_lshl_add_u32 v18, v18, 1, v20
        v_and_b32 v20, 1, v16
        v_lshl_add_u32 v19, v20, 2, v19
        v_lshlrev_b32 v19, 4, v19
        v_lshl_add_u32 v68, v18, 7, v19
        v_min_u32 v18, 39, v0
        s_mul_i32 {t0}, {W}, 40
        v_add_u32 v18, {t0}, v18
        v_lshlrev_b32 v69, 7, v18
        ''')
        a(f'''
        v_lshrrev_b32 v18, 3, v21
        v_mul_u32_u24 v18, 10240, v18
        v_lshrrev_b32 v19, 3, v17
        v_lshl_add_u32 v18, v19, 10, v18
        v_and_b32 v19, 7, v21
        v_lshl_add_u32 v18, v19, 7, v18
        v_lshrrev_b32 v19, 1, v21
        v_xor_b32 v19, v19, v17
        v_and_b32 v19, 7, v19
        v_lshl_add_u32 v70, v19, 4, v18
        s_mov_b32 {sC1}, {hex(f2u(1/640))}
        s_mov_b32 {sLO}, 0x00003f80
        s_mov_b32 {sHI}, 0x3f800000
        s_mov_b32 {sMSK}, 0xffff0000
        s_lshr_b32 {sPY}, {G}, 3
        s_mul_i32 {sPY}, {sPY}, {160*128}
        s_add_u32 {sPY}, {sPY}, {FY}
        v_mov_b32 v16, -1
        v_mov_b32 v17, -1
        v_mov_b32 v18, -1
        v_mov_b32 v19, -1
        ''')
    def ln_loads(self):
        a = self.a
        a(f's_mul_i32 {t0}, {G}, 20480\ns_mul_i32 {t1}, {W}, 5120\ns_add_u32 {t1}, {t1}, {t0}\ns_add_u32 {t1}, {t1}, {FB}')
        for c in range(4):
            for u in range(5): a(f'buffer_load_dwordx4 v[{152+20*c+4*u}:{155+20*c+4*u}], v8, {Q_}, {t0} offen offset:{256*u}')
            if c < 3: a(f's_add_u32 {t0}, {t0}, {32*20480}')
        a('v_add_u32 v20, 4096, v1\nv_mov_b32 v8, v70')
        for c in range(4):
            for u in range(5): a(f'buffer_store_dwordx4 v[16:19], {"v20" if u == 4 else "v1"}, {WS_}, {t1} offen offset:{1024*(u&3)} sc1')
            if c < 3: a(f's_add_u32 {t1}, {t1}, {32*20480}')
    XP = staticmethod(lambda k: f'v[{72+2*k}:{73+2*k}]')
    NP = staticmethod(lambda k: f'v[{112+2*k}:{113+2*k}]')
    def st_acc(self, k):
        P = self.XP(k); r = 2 * (k & 1)
        if k < 2: return [f'v_pk_mul_f32 v[{60+r}:{61+r}], {P}, {P}'] + ([f'v_pk_add_f32 v[56:57], {self.XP(0)}, {P}'] if k else [])
        if k == 2: return [f'v_pk_fma_f32 v[60:61], {P}, {P}, v[60:61]']
        if k == 3: return [f'v_pk_fma_f32 v[62:63], {P}, {P}, v[62:63]', f'v_pk_add_f32 v[58:59], {self.XP(2)}, {P}']
        return [f'v_pk_fma_f32 v[{60+r}:{61+r}], {P}, {P}, v[{60+r}:{61+r}]', f'v_pk_add_f32 v[{56+r}:{57+r}], v[{56+r}:{57+r}], {P}']
    def st_fin(self, fill=(), rr=58, mr=56, sc=False):
        a = self.a; fill = list(fill)
        def gap(n):
            for _ in range(n):
                if fill:
                    f_ = fill.pop(0)
                    f_() if callable(f_) else a(f_)
        a('v_pk_add_f32 v[56:57], v[56:57], v[58:59]\nv_pk_add_f32 v[60:61], v[60:61], v[62:63]')
        gap(1)
        a('v_add_f32 v56, v56, v57\nv_add_f32 v60, v60, v61')
        for r in (8, 4, 2, 1):
            gap(2)
            a(f'v_add_f32_dpp v56, v56, v56 row_ror:{r} row_mask:0xf bank_mask:0xf\nv_add_f32_dpp v60, v60, v60 row_ror:{r} row_mask:0xf bank_mask:0xf')
        gap(1)
        a(f'v_mul_f32 v56, {hex(f2u(1/640))}, v56'); gap(2)
        a('v_mul_f32 v57, v56, v56'); gap(2)
        a(f'v_fma_f32 v57, v60, {sC1}, -v57'); gap(2)
        a('v_max_f32 v57, 0, v57'); gap(2)
        a(f'v_add_f32 v57, {hex(f2u(1e-5))}, v57'); gap(2)
        a(f'v_rsq_f32 v{rr}, v57'); gap(4)
        if sc: a(f'v_mul_f32 v{rr}, {hex(f2u(AL))}, v{rr}'); gap(2)
        a(f'v_mul_f32 v{mr}, v56, v{rr}'); gap(len(fill))
    def unp(self, dst, src): return [f'v_lshlrev_b32 v{dst}, 16, v{src}', f'v_and_b32 v{dst+1}, {sMSK}, v{src}']
    def nrm(self, dst, k, rr=58, mr=56): return f'v_pk_fma_f32 {dst}, {self.XP(k)}, v[{rr}:{rr+1}], v[{mr}:{mr+1}] op_sel_hi:[1,0,0] neg_lo:[0,0,1] neg_hi:[0,0,1]'
    def ln_tail(self, vm, mid=()):
        a = self.a
        F = []
        for k in range(20):
            F.append(f'v_cvt_pk_bf16_f32 v{16+k}, v{72+2*k}, v{73+2*k}')
            if k % 4 == 0 and k: F.append((lambda u=k//4-1: vm.op(f'buffer_store_dwordx4 v[{16+4*u}:{19+4*u}], v{2+u}, {WS_}, {sQB} offen sc1', 'XS')))
        F += list(mid)
        F.append(lambda: vm.op(f'buffer_store_dwordx4 v[32:35], v6, {WS_}, {sQB} offen sc1', 'XS'))
        self.st_fin(F, sc=True)
        def ast(u):
            so = [sO2, sO2, t0, t0, t1][u]
            vm.op(f'buffer_store_dwordx4 v[{36+4*u}:{39+4*u}], v8, {WS_}, {so} offen offset:{2048*(u&1)} sc1', 'AS')
        a(f's_add_u32 {t0}, {sO2}, 4096\ns_add_u32 {t1}, {sO2}, 8192')
        for k in range(21):
            if k < 20: a(self.nrm(self.NP(k & 7), k))
            if k >= 2: a(f'v_cvt_pk_bf16_f32 v{36+k-2}, v{112+2*((k-2)&7)}, v{113+2*((k-2)&7)}')
            if k % 4 == 2 and k > 4: ast(k // 4 - 1)
        a('v_cvt_pk_bf16_f32 v55, v118, v119')
        ast(4)
    def y_read(self, ds, dst):
        for u in range(5): ds.op(f'ds_read2st64_b64 v[{dst+4*u}:{dst+4*u+3}], v10 offset0:{8*u} offset1:{8*u+1}', ('Y', u))
    def ln_subs(self):
        a = self.a
        a('LN_PRE:')
        for k in range(20):
            for o in self.st_acc(k): a(o)
        self.st_fin()
        a(f's_setpc_b64 {RET2}')
        a('LN1B:')
        self.stampn(10)
        a(f's_mov_b32 {sQH}, {sFH}')
        self.ln_offs(0)
        a(f'''
        s_mul_i32 {t4}, {W}, 5120
        s_add_u32 {t4}, {t4}, 20480
        s_add_u32 {t2}, {t2}, {t4}
        s_add_u32 {t2}, {t2}, {31*20480}
        s_mul_i32 {t5}, {N}, 20480
        s_add_u32 m0, {t5}, {t4}
        s_add_u32 {sPY}, {sPY}, {4*160*128}
        ''')
        nq = lambda k: f'v_pk_fma_f32 {self.NP(k & 7)}, {self.XP(k)}, v[142:143], v[142:143] op_sel:[0,0,1] op_sel_hi:[1,0,1] neg_lo:[0,0,1] neg_hi:[0,0,1]'
        for k in range(8): a(nq(k))
        a('s_waitcnt vmcnt(10)\ns_barrier')
        self.stampn(38)
        ds = DS(a); vm = VM(a)
        self.y_read(ds, 16)
        a(f'v_add_u32 v10, 20480, v10\nbuffer_load_dword v14, v69, {WS_}, {sPY} offen sc1')
        for k in range(21):
            if k < 20:
                ds.need(('Y', k // 4))
                r = 64 + 2 * (k & 1)
                for o in self.unp(r, 16 + k): a(o)
            if k:
                for o in self.st_acc(k - 2) if k >= 2 else []: a(o)
            if k < 20: a(f'v_pk_fma_f32 {self.XP(k)}, v[{r}:{r+1}], {self.NP(k & 7)}, {self.XP(k)}')
            if k + 7 < 20 and k: a(nq(k + 7))
            if k == self.P.get('lf1', 12):
                a('s_waitcnt vmcnt(1)'); self.flag(sQH); self.stampn(13)
        for o in self.st_acc(19): a(o)
        a(f'''
        s_waitcnt vmcnt(1)
        v_cmp_ne_u32 vcc, {TAG}, v14
        s_cmp_eq_u32 {N}, 3
        s_cselect_b64 vcc, -1, vcc
        s_cmp_eq_u64 vcc, 0
        s_cselect_b32 {t3}, 1, 0
        s_cbranch_scc0 LN1_NOY
        ''')
        self.y_dma()
        a('LN1_NOY:')
        self.ln_tail(vm)
        self.stampn(42)
        a(f's_setpc_b64 {RET}')
    def y_dma(self):
        a = self.a
        for y in range(4): a(f'buffer_load_dwordx4 v68, {WS_}, {t2} offen offset:{1024*y} sc1 lds')
        a(f's_add_u32 m0, m0, 4096\ns_add_u32 {t2}, {t2}, 4096\nbuffer_load_dwordx4 v68, {WS_}, {t2} offen sc1 lds')
    def ln_unpack(self, src):
        for k in range(20):
            for o in self.unp(72 + 2*k, src + k): self.a(o)
    def ln_offs(self, layer):
        self.a(f'''
        s_lshl_b32 {t1}, {N}, 5
        s_add_u32 {t1}, {t1}, {G}
        s_mul_i32 {t0}, {t1}, 20480
        s_add_u32 {sQB}, {t0}, {XB + layer*SZ}
        s_add_u32 {sO2}, {t0}, {AB + layer*SZ}
        s_add_u32 {t2}, {t0}, {YB}
        s_lshl_b32 {t3}, {t1}, 2
        s_add_u32 {t3}, {t3}, {W}
        s_lshl_b32 {t3}, {t3}, 7
        s_add_u32 {sFH}, {t3}, {FA + layer*4*128*128}
        ''')
    def f_loads(self, vm):
        for u in range(5): vm.op(f'buffer_load_dwordx4 v[{152+4*u}:{155+4*u}], v{2+u}, {WS_}, {sPFL} offen sc1', 'F')
    def f_check(self):
        a = self.a
        a('v_max3_u32 v64, v152, v153, v154\nv_max3_u32 v65, v162, v163, v164')
        for k in range(3): a(f'v_max3_u32 v64, v64, v{155+2*k}, v{156+2*k}\nv_max3_u32 v65, v65, v{165+2*k}, v{166+2*k}')
        a('v_max3_u32 v64, v64, v161, v171\nv_max_u32 v64, v64, v65\nv_cmp_eq_u32 vcc, -1, v64')
    def ln2(self):
        a = self.a; P = self.P
        a(f'''
        s_mov_b32 {N}, {sXH}
        s_add_u32 {sXH}, {sXH}, 1
        s_add_u32 {sO1}, {sO1}, {32*20480}
        ''')
        self.g_sel()
        vm = VM(a, ['PH', 'FS']); ds = DS(a)
        self.stampn(26)
        vm.need('PH'); self.check(self.spin('v9', sPH))
        self.stampn(30)
        for k, o in enumerate(self.h_dma(sHD)): vm.op(o, ('H', k))
        vm.op(self.x_dma(), 'x')
        self.f_loads(vm)
        vm.need('F'); self.f_check()
        a('s_cbranch_vccnz F_RETRY\nF_OK:')
        self.stampn(18)
        for k in range(21):
            if k < 20:
                for o in self.unp(72 + 2*k, 152 + k): a(o)
            if k >= 1:
                for o in self.st_acc(k - 1): a(o)
        self.st_fin((), 68, 70)
        for k in range(22):
            r = 64 + 2 * (k & 1)
            if k < 20: a(self.nrm(f'v[{r}:{r+1}]', k, 68, 70))
            if k >= 2:
                for o in self.st_acc(k - 2): a(o)
            if k < 20: a(f'v_pk_fma_f32 {self.XP(k)}, {self.NP(k)}, v[{r}:{r+1}], {self.XP(k)}')
        self.ln_tail(vm)
        self.stampn(46)
        a('LN2_G:')
        H = {}
        def at(p, f): H.setdefault(p, []).append(f)
        for u in range(5): at(1 + u + (u > 2), lambda u=u: ds.op(f'ds_read2st64_b64 v[{172+4*u}:{175+4*u}], v10 offset0:{8*u} offset1:{8*u+1}', ('Y', u)))
        F = []
        for k in range(20):
            for o in self.unp(112 + 2*k, 172 + k): F.append(lambda o=o: (ds.need(('Y', 4)), a(o)))
        F += [(lambda o=o: a(o)) for o in ['v_add_u32 v10, 20480, v10', f's_add_u32 {sQB}, {sQB}, {32*20480}', f's_add_u32 {sO2}, {sO2}, {32*20480}',
              f's_add_u32 {sPFL}, {sPFL}, {32*20480}', f's_add_u32 {sPH}, {sPH}, {8*112*128}', f's_add_u32 {sHD}, {sHD}, {sHinc}', f's_add_u32 {sXA}, {sXA}, {32*20480}']]
        p = 11
        for f in F:
            at(p, f); p += 1 + (p % 5 == 4)
        assert p < 70, p
        def fl():
            vm.need('AS'); vm.op(self.flag_s(sFH)); self.stampn(22); a(f's_mov_b32 {sFH}, {sQH}\ns_add_u32 {sQH}, {sQH}, 16384')
        at(P.get('laf', 40), fl)
        def nxt():
            vm.op(f'buffer_load_dword v14, v9, {WS_}, {sPH} offen sc1', 'PH')
        at('end', nxt)
        self.g_body(ds, vm, H)
        assert vm.q[-2:] == ['PH', 'FS'], vm.q
    def ln2_ool(self):
        a = self.a
        a(f'F_RETRY:\ns_mov_b32 {CNT}, {LIMIT}\nF_RL:')
        self.f_loads(VM(a)); a('s_waitcnt vmcnt(0)'); self.f_check()
        a(f's_cbranch_vccz F_OK\ns_sub_u32 {CNT}, {CNT}, 1\ns_cbranch_scc0 F_RL\ns_branch F_OK')
        a('Y_LATE:\ns_waitcnt vmcnt(0)'); self.flag(sFH)
        a('Y_FIRST:'); self.poll('v69', sPY); self.y_dma(); a(f's_waitcnt vmcnt(0)\ns_setpc_b64 {RET}')

    def gelu_s(self, acc):
        O = []
        for h in range(2):
            S_ = []
            for i in range(4):
                g = acc + 4 * h + i; u = g + 8; t = 68 + i
                S_.append([f'v_fma_f32 v{t}, v{g}, v{g}, s100', f'v_mul_f32 v{u}, v{u}, v{g}', f'v_mul_f32 v{g}, v{g}, v{t}',
                           f'v_exp_f32 v{g}, -v{g}', f'v_add_f32 v{g}, 1.0, v{g}', f'v_rcp_f32 v{g}, v{g}', f'v_mul_f32 v{u}, v{u}, v{g}'])
            for st in zip(*S_): O += st
            O += [f'v_cvt_pk_bf16_f32 v{64+2*h+q}, v{acc+8+4*h+2*q}, v{acc+9+4*h+2*q}' for q in range(2)]
        return O
    def gelu_p(self, acc):
        G2 = [f'v[{acc+2*q}:{acc+2*q+1}]' for q in range(4)]; U2 = [f'v[{acc+8+2*q}:{acc+9+2*q}]' for q in range(4)]
        T2 = [f'v[{64+2*q}:{65+2*q}]' for q in range(4)]
        g1 = [f'v_pk_fma_f32 {T2[q]}, {G2[q]}, {G2[q]}, s[100:101] op_sel_hi:[1,1,0]' for q in range(4)]
        g1 += [f'v_pk_mul_f32 {U2[q]}, {G2[q]}, {U2[q]}' for q in range(4)]
        g1 += [f'v_pk_mul_f32 {G2[q]}, {G2[q]}, {T2[q]}' for q in range(4)]
        ex = [f'v_exp_f32 v{acc+i}, -v{acc+i}' for i in range(8)]
        g2 = [f'v_pk_add_f32 {G2[q]}, {G2[q]}, 1.0 op_sel_hi:[1,0]' for q in range(4)]
        rc = [f'v_rcp_f32 v{acc+i}, v{acc+i}' for i in range(8)]
        g3 = [f'v_pk_mul_f32 {U2[q]}, {U2[q]}, {G2[q]}' for q in range(4)]
        cv = [f'v_cvt_pk_bf16_f32 v{64+q}, v{acc+8+2*q}, v{acc+9+2*q}' for q in range(4)]
        return g1, ex, g2, rc, g3, cv
    def a_init(self):
        self.a(f'''
        s_mov_b32 {sPA}, {FA}
        s_mul_i32 {sAD}, {G}, {64*1280}
        s_add_u32 {sAD}, {sAD}, {sMA}
        s_add_u32 {sAD}, {sAD}, {AB}
        s_add_u32 {sQB}, {sAD}, {32*1280}
        ''')
    def a_dma(self, slot, soff, srd=WS_):
        O = []
        for cb in range(10):
            p = {0: f's_add_u32 m0, {sMA}, {slot}\n', 4: 's_add_u32 m0, m0, 4096\n', 8: f's_add_u32 m0, m0, 4096\ns_add_u32 {t5}, {soff}, 4096\n'}.get(cb, '')
            O.append(p + f'buffer_load_dwordx4 {"v1" if cb < 4 else "v6"}, {srd}, {soff if cb < 8 else t5} offen offset:{1024*(cb&3)} sc1 lds')
        return O
    def h_dma(self, soff):
        O = []
        for k in range(14):
            s_ = f's_mov_b32 m0, {sMH}\n' if k == 0 else ''
            if k and k & 3 == 0: s_ = f's_add_u32 m0, m0, 4096\ns_add_u32 {soff}, {soff}, {sDUP if k == 12 else 4096}\n'
            O.append(s_ + f'buffer_load_dwordx4 v1, {WS_}, {soff} offen offset:{1024*(k&3)} sc1 lds')
        return O
    def x_dma(self):
        return f's_add_u32 m0, {sMH}, 14336\ns_mov_b32 exec_hi, 0xff\nbuffer_load_dwordx4 v1, {WS_}, {sXA} offen sc1 lds\ns_mov_b32 exec_hi, -1'
    def red_ops(self, ds, srd, voff, soff, vm, pk=True):
        a = self.a
        rd = lambda r, off, tag: (lambda: ds.op(f'ds_read_b128 v[{r}:{r+3}], v12 offset:{off}', tag))
        def add4(d, s_, tag):
            if pk: T_ = [f'v_pk_add_f32 v[{d+e}:{d+e+1}], v[{d+e}:{d+e+1}], v[{s_+e}:{s_+e+1}]' for e in (0, 2)]
            else: T_ = [f'v_add_f32 v{d+e}, v{d+e}, v{s_+e}' for e in range(4)]
            return [(lambda t=t: (ds.need(tag), a(t))) for t in T_]
        R1 = [rd(32, 0, None), rd(40, 5376, 'p1a'), rd(36, 16, None), rd(44, 5392, 'p1b'), rd(64, 10752, 'p2a'), rd(68, 10768, 'p2b')]
        A1 = add4(32, 40, 'p1a') + add4(36, 44, 'p1b')
        R2 = [rd(40, 16128, 'p3a'), rd(44, 16144, 'p3b')]
        A2 = add4(32, 64, 'p2a') + add4(36, 68, 'p2b')
        R3 = [lambda: (vm.need('x'), ds.op('ds_read_b128 v[64:67], v7 offset:14336', 'x'))]
        A3 = add4(32, 40, 'p3a') + add4(36, 44, 'p3b')
        T_ = []
        for h in (0, 2):
            for k in (h, h + 1): T_ += [f'v_lshlrev_b32 v{68+2*(k&1)}, 16, v{64+k}', f'v_and_b32 v{69+2*(k&1)}, 0xffff0000, v{64+k}']
            for k in (h, h + 1):
                d = 32 + 2 * k; t = 68 + 2 * (k & 1)
                if pk: T_ += [f'v_pk_fma_f32 v[{d}:{d+1}], v[{d}:{d+1}], s[100:101], v[{t}:{t+1}] op_sel:[0,1,0] op_sel_hi:[1,1,1]']
                else: T_ += [f'v_fma_f32 v{d+e}, v{d+e}, s101, v{t+e}' for e in range(2)]
            T_ += [f'v_cvt_pk_bf16_f32 v{64+k}, v{32+2*k}, v{33+2*k}' for k in (h, h + 1)]
        A4 = [(lambda t=t: (ds.need('x'), a(t))) for t in T_]
        ST = [lambda: vm.op(f's_mov_b32 exec_hi, 0xff\nbuffer_store_dwordx4 v[64:67], {voff}, {srd}, {soff} offen sc1\ns_mov_b32 exec_hi, -1', 'FS')]
        return R1, A1, R2, A2, R3, A3, A4, ST
    def g1_init(self):
        self.a(f'''
        s_mov_b32 {N}, 0
        s_lshl_b32 {t2}, {FS}, 2
        s_add_u32 {t2}, {t2}, {W}
        s_mul_i32 {t1}, {G}, {4*HST}
        s_lshl_b32 {t3}, {t2}, 9
        s_add_u32 {t1}, {t1}, {t3}
        s_add_u32 {sQH}, {t1}, {HB}
        s_mul_i32 {t0}, {G}, 112
        s_add_u32 {t0}, {t0}, {t2}
        s_lshl_b32 {t0}, {t0}, 7
        s_add_u32 {sFH}, {t0}, {FH}
        s_mov_b32 {sXH}, 0
        ''')
        self.g_offs(); self.g_sel()
        self.a(f's_sub_u32 {sO1}, {sO1}, {32*20480}\ns_sub_u32 {sXA}, {sXA}, {32*20480}\ns_sub_u32 {sHD}, {sHD}, {sHinc}')
    def g_sel(self):
        self.a(f'''
        s_cmp_ge_u32 {sXH}, 4
        s_cselect_b32 {sO1}, {sOUT}, {sO1}
        s_cselect_b32 s56, s40, s44
        s_cselect_b32 s57, s41, s45
        s_cselect_b32 s58, s42, s46
        s_cselect_b64 {sSEL}, -1, 0
        ''')
    def g_offs(self):
        self.a(f'''
        s_lshl_b32 {t0}, {sXH}, 3
        s_add_u32 {t0}, {t0}, {X}
        s_mul_i32 {t0}, {t0}, 112
        s_mul_i32 {t1}, {W}, 28
        s_add_u32 {t0}, {t0}, {t1}
        s_lshl_b32 {t0}, {t0}, 7
        s_and_b32 {t1}, {T}, 2
        s_lshl_b32 {t1}, {t1}, 5
        s_add_u32 {t0}, {t0}, {t1}
        s_add_u32 {sPH}, {t0}, {FH}
        s_lshl_b32 {t0}, {sXH}, 5
        s_add_u32 {t0}, {t0}, {T}          ; m*32+T
        s_mul_i32 {t1}, {t0}, {HST}
        s_mul_i32 {t2}, {W}, 14336
        s_add_u32 {t1}, {t1}, {t2}
        s_add_u32 {sHD}, {t1}, {HB}
        s_mul_i32 {t2}, {S}, 2560
        s_mul_i32 {t3}, {W}, 640
        s_add_u32 {t2}, {t2}, {t3}
        s_mul_i32 {t1}, {t0}, 20480
        s_add_u32 {t1}, {t1}, {t2}
        s_add_u32 {sXA}, {t1}, {XB}
        s_add_u32 {sO1}, {t1}, {FB}
        s_and_b32 {t0}, {t0}, 127          ; c*32+T
        s_mul_i32 {t1}, {t0}, 20480
        s_mul_i32 {t2}, {S}, 160
        s_add_u32 {sOUT}, {t1}, {t2}
        ''')
    def g1_iter(self, first, vq, dq):
        a = self.a; P = self.P
        ds = DS(a); ds.q = list(dq); vm = VM(a, vq)
        ds.done |= {t for t in (('Q', 0), ('Q', 1)) if t not in dq}
        QS = [2, 0, 1, 3]
        qr = lambda ks: 48 + 4 * QS[ks & 3]
        def rdQ(ks, tag=None):
            kk = ks % 40
            ds.op(f'ds_read_b128 v[{qr(ks)}:{qr(ks)+3}], v{2+(kk&3)} offset:{(L_B if ks >= 40 else L_A) + 1024*(kk>>2)}', tag or ('Q', ks))
        hr = lambda k: 48 + 4 * (k % 3)
        def rdH(k):
            w_ = {0: 3, 4: 8, 9: 13}.get(k)
            if w_ is not None: vm.need(('H', w_))
            ds.op(f'ds_read_b128 v[{hr(k)}:{hr(k)+3}], v7 offset:{1024*k}', ('H', k))
        ev = {}
        def at(pos, *fs): ev.setdefault(pos, []).extend(fs)
        def spread(p0, p1, fs):
            n = len(fs)
            for i, f in enumerate(fs): at(p0 + (i * (p1 - p0 + 1)) // n, f)
        A_ = lambda t: (lambda: a(t))
        V_ = lambda t, tag=None: (lambda: vm.op(t, tag))
        wj = lambda j: (lambda: ds.op(f'ds_write_b128 v11, v[{(16+4*j) if j < 4 else 60}:{(19+4*j) if j < 4 else 63}] offset:{64*j}', ('W', j)))
        G0 = 80
        at(0, lambda: rdQ(2))
        if not first: at(0, wj(4))
        at(0, lambda: rdQ(3))
        for ks in range(1, 77):
            if ks == 37:
                def b2():
                    vm.need(('B', 9)); a('s_barrier')
                at(36, b2)
            at(ks, lambda ks=ks: rdQ(ks + 3))
        if first:
            at(P.get('yf', 14), lambda: vm.need('PRE'), V_(self.flag_s(sO2) + f'\ns_add_u32 {sO2}, {sO2}, {640*128}'), V_(self.flag_s(sO2)))
            spread(21, 76, [V_(self.wd_ld(f)) for f in range(NWC, 70)])
        else:
            R1, A1, R2, A2, R3, A3, A4, ST = self.red_ops(ds, WSB, 'v71', sO1, vm, False)
            at(2, lambda: (ds.need(('W', 4)), vm.need(('A', 9)), a('s_barrier')))
            at(3, lambda: vm.need('HB'), V_(self.flag_s(sFH, 64)))
            fs = P.get('fs', 24)
            at(2, R1[0]); spread(3, 5, R1[1:]); spread(7, fs - 1, A1 + R2 + A2 + R3 + A3 + A4)
            at(6, A_(f's_cmp_eq_u32 {N}, 6\ns_cselect_b32 {sO1}, {sOUT}, {sO1}\ns_cselect_b64 {sSEL}, -1, {sSEL}'))
            at(6, A_(f's_cselect_b32 s56, s40, s56\ns_cselect_b32 s57, s41, s57\ns_cselect_b32 s58, {SZ}, s58'))
            hp, hc = P.get('hp', 25), P.get('hc', 46)
            at(hp, V_(f'buffer_load_dword v14, v9, {WS_}, {sPH} offen sc1', 'PH'))
            at(fs, A_(f'v_cndmask_b32 v71, v1, v13, {sSEL}')); at(fs, *ST)
            at(28, A_(f's_add_u32 {sO1}, {sO1}, {32*20480}\ns_add_u32 {sFH}, {sFH}, {8*112*128}'))
            at(hc, lambda: vm.need('PH'), lambda: self.check(self.spin('v9', sPH)))
            for k, o in enumerate(self.h_dma(sHD)): at(hc + 1 + 2 * k, V_(o, ('H', k)))
            at(hc + 29, V_(self.x_dma(), 'x'))
            at(32, A_(f's_add_u32 {sXA}, {sXA}, {32*20480}\ns_add_u32 {sHD}, {sHD}, {sHinc}'))
        ap, ac = P.get('ap', 56), P.get('ac', 76)
        at(30, A_(f's_add_u32 {sPA}, {sPA}, 16384\ns_min_u32 {sPA}, {sPA}, {FA + 7*16384}'))
        at(31, A_(f's_add_u32 {sAD}, {sAD}, {8*64*1280}\ns_add_u32 {sQB}, {sQB}, {8*64*1280}'))
        at(ap, V_(f'buffer_load_dword v14, v10, {WS_}, {sPA} offen sc1', 'PA'))
        ga = P.get('ga', 68)
        spread(41, ga, [A_(o) for o in self.gelu_s(16)])
        at(ga + 2, V_(f'buffer_store_dwordx4 v[64:67], v8, {WS_}, {sQH} offen sc1\ns_add_u32 {sQH}, {sQH}, {2*HST}', 'HA'))
        at(ac, lambda: vm.need('PA'), A_(self.acheck() + f'\ns_cmp_eq_u32 {N}, 7\ns_cselect_b32 s62, 0, s62'))
        AD = [V_(o, ('A', k)) for k, o in enumerate(self.a_dma(L_A, sAD, WSD))]
        BD = [V_(o, ('B', k)) for k, o in enumerate(self.a_dma(L_B, sQB))]
        for k in range(10): at((0 if first else 3) + 2 * k, BD[k])
        at(77, AD[0]); at(79, AD[1])
        g1, ex, g2, rc, g3, cv = self.gelu_p(32)
        HBs = V_(f'buffer_store_dwordx4 v[64:67], v8, {WS_}, {sQH} offen sc1\ns_add_u32 {sQH}, {sQH}, {30*HST}', 'HB')
        HAf = [lambda: vm.need('HA'), V_(self.flag_s(sFH))]
        def b1():
            L = a.label('ONTIME')
            a(f's_cmp_lg_u32 s62, 0\ns_cbranch_scc1 {L}\ns_cmp_eq_u32 {N}, 7\ns_cbranch_scc1 {L}\ns_call_b64 {RET}, A_LATE\n{L}:')
            vm.need(('A', 9) if first else ('A', 1)); a('s_barrier')
        if not first:
            at(78, lambda: rdH(0)); at(79, lambda: rdH(1))
            for k in range(2, 14): at(G0 + 5 * (k - 2), lambda k=k: rdH(k))
            b = G0 + P.get('gb', 1)
            at(b, *map(A_, g1)); spread(b + 1, b + 6, list(map(A_, ex))); at(b + 7, *map(A_, g2))
            spread(b + 8, b + 13, list(map(A_, rc))); at(b + 14, *map(A_, g3)); spread(b + 15, b + 16, list(map(A_, cv)))
            at(b + 17, HBs)
            for k in range(2, 10): at(G0 + P.get('as', 5) * (k - 2) + 3, AD[k])
            at(G0 + P.get('haf', 36), *HAf)
            at(G0 + 60, b1, lambda: rdQ(0, ('Q', 0)))
            at(G0 + 64, lambda: rdQ(1, ('Q', 1)))
            at(G0 + 36, lambda: self.stampn(34)); at(G0 + 61, lambda: self.stampn(42))
            at(G0 + 62, A_(f's_add_u32 {N}, {N}, 1'))
            at(G0 + 63, A_(f's_add_u32 {sPH}, {sPH}, {8*112*128}'))
            at(G0 + 67, wj(0)); at(G0 + 68, wj(1)); at(G0 + 69, wj(2), wj(3))
        for ks in range(80):
            ds.need(('Q', ks))
            c = 'v[16:31]' if ks < 40 else 'v[32:47]'; kk = ks % 40
            a(f'v_mfma_f32_32x32x16_bf16 {c}, v[{72+4*kk}:{75+4*kk}], v[{qr(ks)}:{qr(ks)+3}], {c if kk else 0}')
            for f in ev.get(ks, []): f()
            if ks == 39: self.stampn(18)
        self.stampn(26)
        if first:
            rest = AD[2:]
            for i, g in enumerate(g1 + ex + g2 + rc + g3 + cv):
                if i % 5 == 0 and rest: rest.pop(0)()
                a(g)
            assert not rest
            HBs()
            for f in HAf: f()
            b1(); rdQ(0, ('Q', 0)); rdQ(1, ('Q', 1))
            ds.q = [('Q', 0), ('Q', 1)]
            a(f's_add_u32 {N}, {N}, 1\ns_waitcnt lgkmcnt(0)')
        else:
            for i in range(70):
                k, j = divmod(i, 5)
                ds.need(('H', k))
                c = f'v[{16+4*j}:{19+4*j}]' if j < 4 else 'v[60:63]'
                a(f'v_mfma_f32_16x16x32_bf16 {c}, {self.wd_reg(k, j)}, v[{hr(k)}:{hr(k)+3}], {c if k else 0}')
                for f in ev.get(G0 + i, []): f()
        return vm, ds
    def g1_loop(self):
        a = self.a
        self.stampn(10)
        a(f'ds_read_b128 v[56:59], v2 offset:{L_A}\nds_read_b128 v[48:51], v3 offset:{L_A}')
        vf, df = self.g1_iter(True, ['PRE'], [('Q', 0), ('Q', 1)])
        keep = (self.a, list(self.ool)); self.a = Asm()
        v1_, d1 = self.g1_iter(False, vf.q, df.q)
        self.a = Asm(); v2_, d2 = self.g1_iter(False, v1_.q, d1.q)
        assert v2_.q == v1_.q and d2.q == d1.q, (v1_.q, v2_.q, d1.q, d2.q)
        for tag in ('HB', 'x', ('A', 9)):
            x_, y_ = vf.after(tag), v1_.after(tag)
            assert x_ is None or (y_ is not None and x_ >= y_) or (tag == 'HB' and x_ >= v1_.after(('A', 9))), (tag, x_, y_)
        self.a, self.ool = keep
        a('G1_LOOP:')
        i0 = len(a.l)
        self.stampn(10)
        vm, ds = self.g1_iter(False, v1_.q, d1.q)
        a(f's_cmp_lt_u32 {N}, 8\ns_cbranch_scc1 G1_LOOP')
        body = [l for l in a.l[i0:] if not l.endswith(':')]
        b1_ = Asm(); b1_.l = body; b1_.text(); b2_ = Asm(); b2_.l = body + body; b2_.text()
        assert b2_.nops == 2 * b1_.nops, (b1_.nops, b2_.nops)
        print('loop nops', b1_.nops, 'lines', len(body), 'vm', vm.log)
        self.stampn(10)
        ds.done = set()
        ds.op('ds_write_b128 v11, v[60:63] offset:256', ('W', 4))
        ds.need(('W', 4)); a('s_barrier')
        R = self.red_ops(ds, WSB, 'v13', sO1, vm)
        for f in R[0]: f()
        vm.need('HB'); vm.op(self.flag_s(sFH, 64))
        for grp in R[1:]:
            for f in grp: f()
    def a_late(self):
        a = self.a
        a('A_LATE:')
        self.poll('v10', sPA)
        for o in self.a_dma(L_A, sAD): a(o)
        a(f's_waitcnt vmcnt(0)\ns_setpc_b64 {RET}')
    def g_body(self, ds, vm, hooks={}):
        a = self.a
        def rd(k):
            vm.need(('H', k)); ds.op(f'ds_read_b128 v[{48+4*(k%3)}:{51+4*(k%3)}], v7 offset:{1024*k}', ('H', k))
        rd(0)
        self.stamp(52)
        rd(1)
        for ks in range(14):
            ds.need(('H', ks))
            for j in range(5):
                c = f'v[{16+4*j}:{19+4*j}]' if j < 4 else 'v[60:63]'
                a(f'v_mfma_f32_16x16x32_bf16 {c}, {self.wd_reg(ks, j)}, v[{48+4*(ks%3)}:{51+4*(ks%3)}], {c if ks else 0}')
                if j == 0 and ks + 2 < 14: rd(ks + 2)
                for f in hooks.get(5 * ks + j, []): f()
                if ks == 12 and j == 1: a('s_barrier')
                if ks == 13 and j >= 2: ds.op(f'ds_write_b128 v11, v[{16+4*(j-2)}:{19+4*(j-2)}] offset:{64*(j-2)}')
        self.stamp(53)
        if hooks: self.stampn(34)
        ds.op('ds_write_b128 v11, v[28:31] offset:192'); ds.op('ds_write_b128 v11, v[60:63] offset:256', 'W')
        a(f'v_cndmask_b32 v16, v1, v13, {sSEL}')
        for f in hooks.get('end', []): f()
        ds.need('W'); a('s_barrier')
        for grp in self.red_ops(ds, WSB, 'v16', sO1, vm):
            for f in grp: f()
        self.stamp(54)
        if hooks: self.stampn(5)
    def g_sub(self):
        a = self.a
        a('G_SUB:')
        self.g_offs(); self.g_sel()
        self.stamp(50)
        self.poll('v9', sPH)
        self.stamp(51)
        ds = DS(a); vm = VM(a)
        for k, o in enumerate(self.h_dma(sHD)): vm.op(o, ('H', k))
        vm.op(self.x_dma(), 'x')
        self.g_body(ds, vm)
        a(f's_setpc_b64 {RET}')

    def tsw(self):
        if self.timers: self.a('v_mov_b32 v0, v71')
        self.tv = 'v0'
    def p0_flag(self, lab, g1):
        a = self.a; n = 16 if g1 else 0
        a(f's_waitcnt vmcnt(3)\ns_bitcmp1_b32 {ROLE}, 3\ns_cbranch_scc0 {lab}_NP')
        self.wd_prep()
        if g1: self.w1_consume(0, 16, None)
        a('s_waitcnt vmcnt(10)')
        self.flag(t4)
        self.stamp(2)
        a('s_waitcnt vmcnt(1)')
        self.flag(t5)
        self.stamp(58)
        a(f's_branch {lab}_P\n{lab}_NP:')
        if g1: self.w1_consume(0, 16, None)
        a('s_waitcnt vmcnt(0)')
        self.flag(t4)
        self.stamp(2)
        a(f'{lab}_P:')
    def main(self):
        a = self.a
        self.prologue()
        self.p0()
        self.stamp(56)
        a(f'''
        s_bitcmp1_b32 {ROLE}, 0
        s_cbranch_scc1 R_G1
        s_bitcmp1_b32 {ROLE}, 2
        s_cbranch_scc1 R_LN
        ''')
        self.p0_flag('G2', False)
        a(f's_call_b64 {RET2}, WD_ALL')
        self.tsw()
        a(f'''
        s_mov_b32 {sXH}, 0
        G2_LOOP:
        s_call_b64 {RET}, G_SUB
        s_add_u32 {sXH}, {sXH}, 1
        s_cmp_lt_u32 {sXH}, 8
        s_cbranch_scc1 G2_LOOP
        s_branch DONE
        ''')
        self.tv = 'v71'
        a('R_LN:')
        self.ln_setup()
        a('s_waitcnt vmcnt(0)')
        self.flag(t4)
        self.stamp(2)
        self.ln_loads()
        self.wd_init()
        a('s_waitcnt vmcnt(20)')
        for c in (3, 2, 1, 0):
            self.ln_unpack(152 + 20 * c)
            a(f's_call_b64 {RET2}, LN_PRE\nv_mov_b32 v{144+2*c if c else 142}, v58\nv_mov_b32 v{145+2*c if c else 143}, v56')
        self.poll('v70', t3)
        self.tsw()
        self.stamp(3)
        nw0 = self.P.get('nw0', 24)
        for f in range(nw0): a(self.wd_ld(f))
        self.stamp(4)
        a(f'''
        s_mov_b32 {N}, 0
        s_mov_b32 {sFH}, {FF - 0x20000}
        s_mul_i32 {t2}, {G}, 20480
        s_mul_i32 m0, {W}, 5120
        s_add_u32 {t2}, {t2}, m0
        s_add_u32 {t2}, {t2}, {YB}
        s_call_b64 {RET}, Y_FIRST
        ''')
        for c in range(4):
            a(f's_call_b64 {RET}, LN1B')
            if c < 3:
                self.ln_unpack(172 + 20 * c)
                a(f'''
                v_mov_b32 v142, v{146+2*c}
                v_mov_b32 v143, v{147+2*c}
                s_mov_b32 {N}, {c+1}
                s_cmp_lg_u32 {t3}, 0
                s_cbranch_scc1 Y_OK{c}
                s_call_b64 {RET}, Y_LATE
                Y_OK{c}:
                ''')
        for f in range(nw0, 70): a(self.wd_ld(f))
        a(f's_mov_b32 {sXH}, 0\nv_subrev_u32 v10, {4*20480}, v10')
        self.g_offs(); self.g_sel()
        a(f's_waitcnt vmcnt({70 - nw0})'); self.flag(sFH); self.stamp(17)
        self.poll('v9', sPH)
        for o in self.h_dma(sHD) + [self.x_dma()]: a(o)
        a(f'''
        s_mul_i32 {t0}, {G}, 20480
        s_add_u32 {sPFL}, {t0}, {FB - 32*20480}
        s_add_u32 {sQH}, {sFH}, 16384
        s_mov_b32 {N}, 4
        s_waitcnt vmcnt(0)
        s_branch LN2_G
        LN2_LOOP:
        ''')
        self.ln2()
        a(f'''
        s_cmp_lt_u32 {sXH}, 4
        s_cbranch_scc1 LN2_LOOP
        s_mov_b32 {sXH}, 5
        s_branch G2_LOOP
        ''')
        self.tv = 'v71'
        a('R_G1:')
        self.p0_flag('G1', True)
        a(f's_bitcmp1_b32 {ROLE}, 1\ns_cbranch_scc1 R_CONV')
        self.w1_issue(16); self.w1_consume(16, 16); self.w1_issue(8); self.w1_consume(32, 8)
        a(f's_call_b64 {RET2}, WD_ALL')
        self.a_init()
        a(f's_mov_b32 {sO2}, {FF - 0x20000}\ns_branch G1_LATE\nR_CONV:')
        self.hbuild()
        self.stamp(57)
        self.hbuild2()
        self.conv()
        assert self.conv_q[-3:] == ['A', ('Y', 2), ('Y', 3)], self.conv_q
        a(f'''
        s_cmp_lg_u32 s62, 0
        s_cbranch_scc1 G1_MAIN
        s_add_u32 {t0}, {sO2}, {640*128}
        s_waitcnt vmcnt(0)
        {self.flag_s(sO2)}
        {self.flag_s(t0)}
        G1_LATE:
        s_call_b64 {RET}, A_LATE
        G1_MAIN:
        ''')
        self.g1_init()
        self.tsw()
        a('s_waitcnt vmcnt(2)\ns_barrier')
        self.g1_loop()
        a(f'''
        s_mov_b32 {sXH}, 7
        s_call_b64 {RET}, G_SUB
        DONE:
        ''')
        self.stamp(62)
        if self.timers:
            a(f'''
            s_memrealtime {TM}
            s_waitcnt lgkmcnt(0)
            v_writelane_b32 v0, s96, 61
            s_lshl_b32 {t0}, s2, 2
            s_add_u32 {t0}, {t0}, {W}
            s_lshl_b32 {t0}, {t0}, 8
            s_add_u32 {t0}, {t0}, {TIM}
            v_lshrrev_b32 v16, 2, v1
            buffer_store_dword v0, v16, {WS_}, {t0} offen
            ''')
        a(f'''
        s_or_b32 {t0}, s2, {W}
        s_cbranch_scc1 FIN
        ''')
        self.flag('0')
        a('''
        FIN:
        s_waitcnt vmcnt(0)
        EXIT:
        s_endpgm
        ''')
        self.g_sub(); self.ln_subs(); self.wd_subs(); self.a_late(); self.ln2_ool(); self.emit_ool()

def build(path, **kw):
    g = Gen(**kw); g.main()
    ref = open('interleave_layers__ssm_conv_h3__geglu_ffn__prompt.s.ref').read().split('\n')
    hdr = [l for l in ref if l.startswith(';') and '@launch' not in l]
    hdr = hdr[:14] + ['; @launch grid=(256,1,1) block=(256,1,1) lds=163840']
    txt = '\n'.join(hdr) + f'\n.amdgcn_target "amdgcn-amd-amdhsa--gfx950"\n.text\n.globl {KN}\n.p2align 8\n.type {KN},@function\n{KN}:\n'
    txt += g.a.text() + kern_desc(KN)
    open(path, 'w').write(txt)
    print(path, 'lines', txt.count('\n'), 'nops', g.a.nops)

if __name__ == '__main__':
    build('k_t.s', timers=True)
    build('k.s')
```
